```python
import torch

def _softmax(x, axis=-1):
    return torch.softmax(x, dim=axis)
def _gelu(x):
    return torch.nn.functional.gelu(x, approximate="tanh")
def _silu(x):
    return torch.nn.functional.silu(x)
def _sigmoid(x):
    return torch.sigmoid(x)
def _layernorm(x, axis=-1, eps=1e-5):
    m = x.mean(dim=axis, keepdim=True)
    v = x.var(dim=axis, keepdim=True, unbiased=False)
    return (x - m) / torch.sqrt(v + eps)
def _scatter_add(tgt, idx, src, axis=0):
    return tgt.clone().index_add_(axis, idx, src)
def _segment_sum(src, seg, n):
    out = torch.zeros((n,) + src.shape[1:], dtype=src.dtype)
    return out.index_add_(0, seg, src)
def _pad(x, pw):
    flat = tuple(v for pair in reversed(pw) for v in pair)
    return torch.nn.functional.pad(x, flat)

kernel_name = 'recurrent_scan__linear_attn_block__dense_activation_gelu__prompt'

def setup_inputs():

    _w = (lambda a: (lambda t: t.to(torch.bfloat16) if t.is_floating_point() else t)(torch.as_tensor(a)))
    def _A_setup():
        B, S, D = 1, 2048, 512
        return {
            "x": _w((lambda *s: torch.randn(*s, dtype=torch.bfloat16) * 0.05)(B, S, D)),
            "wqkv": _w((lambda *s: torch.randn(*s, dtype=torch.bfloat16) * 0.2)(D, 3 * D)),
            "wo": _w((lambda *s: torch.randn(*s, dtype=torch.bfloat16) * 0.2)(D, D)),
        }
    _A_in = _A_setup()

    def _B_setup():
        B, S, D, F = 1, 2048, 512, 1792
        return {
            "x": _w((lambda *s: torch.randn(*s, dtype=torch.bfloat16) * 0.05)(B, S, D)),
            "w1": _w((lambda *s: torch.randn(*s, dtype=torch.bfloat16) * 0.4)(D, F) * (D ** -0.5)),
            "b1": _w((lambda *s: torch.randn(*s, dtype=torch.bfloat16) * 12.8)(F) * 0.01),
            "w2": _w((lambda *s: torch.randn(*s, dtype=torch.bfloat16) * 0.1)(F, D) * (F ** -0.5)),
            "b2": _w((lambda *s: torch.randn(*s, dtype=torch.bfloat16) * 1.6)(D) * 0.01),
        }
    _B_in = _B_setup()

    return {
        "A_x": _A_in["x"],
        "A_wqkv": _A_in["wqkv"],
        "A_wo": _A_in["wo"],
        "B_x": _B_in["x"],
        "B_w1": _B_in["w1"],
        "B_b1": _B_in["b1"],
        "B_w2": _B_in["w2"],
        "B_b2": _B_in["b2"],
    }

def reference(A_x, A_wqkv, A_wo, B_x, B_w1, B_b1, B_w2, B_b2):
    def _A_ref(x, wqkv, wo):
        B, S, D = x.shape
        H = 32; Dh = D // H
        qkv = (lambda x, *d: x.permute(*d))((x @ wqkv).reshape(B, S, 3, H, Dh), 2, 0, 3, 1, 4)
        q, k, v = qkv[0], qkv[1], qkv[2]
        phi = lambda t: torch.where(t > 0, t + 1, torch.exp(t)) + 1e-6
        pq, pk = phi(q), phi(k)
        kv = torch.einsum("bhsd,bhse->bhde", pk, v)
        z = torch.einsum("bhsd->bhd", pk)
        num = torch.einsum("bhqd,bhde->bhqe", pq, kv)
        den = torch.einsum("bhqd,bhd->bhq", pq, z)[..., None] + 1e-6
        o = num / den
        return (lambda x, *d: x.permute(*d))(o, 0, 2, 1, 3).reshape(B, S, D) @ wo

    def _B_ref(x, w1, b1, w2, b2):
        h = torch.einsum("bsd,df->bsf", x, w1) + b1
        h = _gelu(h)
        return torch.einsum("bsf,fd->bsd", h, w2) + b2

    x = A_x
    xn = _layernorm(x, axis=-1)
    s = _A_ref(xn, A_wqkv, A_wo)
    g = _silu(_B_ref(xn, B_w1, B_b1, B_w2, B_b2))
    return x + s * g
```

```python
import re


class Stream:
    def __init__(self):
        self.lines = []
        self.vm = []
        self.lg = []

    def e(self, s):
        for ln in s.split("\n"):
            ln = ln.strip()
            if ln:
                self.lines.append(ln)

    def c(self, s):
        self.lines.append("; " + s)

    def vmem(self, s, tag):
        self.e(s)
        self.vm.append(tag)

    def lds(self, s, tag):
        self.e(s)
        self.lg.append(tag)

    def _n_after(self, q, tags):
        idx = -1
        for i, t in enumerate(q):
            if t in tags:
                idx = i
        return idx

    def vm_after(self, i):
        return sum(1 for t in self.vm[i + 1:] if not t.endswith("MARK"))

    def pop_mark(self, mark):
        if mark not in self.vm:
            return None
        i = self.vm.index(mark)
        n = self.vm_after(i)
        self.vm.pop(i)
        return n

    def wait(self, vm=(), lg=()):
        if isinstance(vm, str):
            vm = (vm,)
        if isinstance(lg, str):
            lg = (lg,)
        parts = []
        i = self._n_after(self.vm, vm)
        if i >= 0:
            n = self.vm_after(i)
            assert n <= 63
            parts.append("vmcnt(%d)" % n)
            self.vm = self.vm[i + 1:]
        i = self._n_after(self.lg, lg)
        if i >= 0:
            n = len(self.lg) - 1 - i
            if n > 15:
                n = 15
                i = len(self.lg) - 1 - n
            parts.append("lgkmcnt(%d)" % n)
            self.lg = self.lg[i + 1:]
        if parts:
            self.e("s_waitcnt " + " ".join(parts))

    def wait_lg_all(self):
        if self.lg:
            self.e("s_waitcnt lgkmcnt(0)")
            self.lg = []

    def wait_vm_all(self):
        self.e("s_waitcnt vmcnt(0)")
        self.vm = []


_REG = re.compile(r"\b([vsa])(\d+)\b|\b([vsa])\[(\d+):(\d+)\]")


def regs_of(op):
    out = set()
    for m in _REG.finditer(op):
        if m.group(1):
            out.add((m.group(1), int(m.group(2))))
        else:
            for i in range(int(m.group(4)), int(m.group(5)) + 1):
                out.add((m.group(3), i))
    if re.search(r"\bvcc\b", op):
        out.add(("s", "vcc"))
    if re.search(r"\bm0\b", op):
        out.add(("s", "m0"))
    if re.search(r"\bexec\b", op):
        out.add(("s", "exec"))
    return out


TRANS = ("v_exp_f32", "v_log_f32", "v_rcp_f32", "v_rsq_f32", "v_sqrt_f32")


def split_ops(rest):
    ops, depth, cur = [], 0, ""
    for ch in rest:
        if ch == "[":
            depth += 1
        if ch == "]":
            depth -= 1
        if ch == "," and depth == 0:
            ops.append(cur.strip())
            cur = ""
        else:
            cur += ch
    if cur.strip():
        ops.append(cur.strip())
    return ops


class Ins:
    def __init__(self, line):
        self.line = line
        p = line.split(None, 1)
        self.op = p[0]
        ops = split_ops(p[1]) if len(p) > 1 else []
        op = self.op
        self.kind = "other"
        self.dst, self.src = set(), set()
        self.srcC = set()
        self.passes = 0
        self.states = 1
        if op == "s_nop":
            self.states = int(ops[0], 0) + 1
        elif op.startswith("v_mfma"):
            self.kind = "mfma"
            self.passes = 8 if "32x32" in op else 4
            self.dst = regs_of(ops[0])
            self.src = regs_of(ops[1]) | regs_of(ops[2])
            self.srcC = regs_of(ops[3])
        elif op.startswith("v_"):
            self.kind = "valu"
            self.dst = regs_of(ops[0])
            for o in ops[1:]:
                self.src |= regs_of(o)
            if op.startswith("v_dot2c") or op.startswith("v_fmac") or op.startswith("v_permlane"):
                self.src |= self.dst
            if op.startswith("v_permlane"):
                self.dst |= regs_of(ops[1])
            if op.startswith("v_cndmask") and len(ops) == 3:
                self.src.add(("s", "vcc"))
        elif op.startswith("buffer_") or op.startswith("global_"):
            self.kind = "vmem"
            is_store = "store" in op or "atomic" in op
            lds = re.search(r"\blds\b", line) is not None
            if is_store or lds:
                for o in ops:
                    self.src |= regs_of(o)
                if lds:
                    self.src.add(("s", "m0"))
                self.wide_store = is_store and ("x4" in op or "x3" in op)
                self.store_data = regs_of(ops[0]) if (is_store and op.startswith("buffer_")) else set()
            else:
                self.dst = regs_of(ops[0])
                for o in ops[1:]:
                    self.src |= regs_of(o)
        elif op.startswith("ds_"):
            self.kind = "ds"
            if op.startswith("ds_read"):
                self.dst = regs_of(ops[0])
                for o in ops[1:]:
                    self.src |= regs_of(o)
            else:
                for o in ops:
                    self.src |= regs_of(o)
        elif op.startswith("s_"):
            self.kind = "salu"
            if op.startswith("s_cmp") or op.startswith("s_cbranch") or op in ("s_waitcnt", "s_barrier", "s_branch", "s_sleep", "s_setprio", "s_endpgm") or op.startswith("s_bitcmp"):
                for o in ops:
                    self.src |= regs_of(o)
            else:
                if ops:
                    self.dst = regs_of(ops[0])
                for o in ops[1:]:
                    self.src |= regs_of(o)

    @property
    def is_trans(self):
        return any(self.op.startswith(t) for t in TRANS)

    @property
    def is_dot(self):
        return self.op.startswith("v_dot")


def need(prod, cons):
    n = 0
    vd = {r for r in prod.dst if r[0] in "va"}
    sd = {r for r in prod.dst if r[0] == "s"}
    if prod.kind == "mfma":
        p8 = prod.passes == 8
        touch = cons.src | cons.dst | cons.srcC
        if cons.kind == "mfma":
            if vd & cons.src:
                n = max(n, 12 if p8 else 8)
            if vd & cons.srcC:
                if not (vd == cons.srcC and prod.passes == cons.passes):
                    n = max(n, 10 if p8 else 6)
            elif vd & cons.dst:
                n = max(n, 12 if p8 else 8)
        elif cons.kind in ("valu", "vmem", "ds"):
            if vd & touch:
                n = max(n, 12 if p8 else 8)
        if cons.kind in ("valu", "ds", "vmem") and (prod.srcC & cons.dst):
            n = max(n, 7 if p8 else 3)
    if prod.kind == "valu":
        if cons.kind == "mfma" and vd & (cons.src | cons.srcC):
            n = max(n, 3 if prod.is_dot else 2)
        if prod.is_trans and cons.kind in ("valu", "vmem", "ds", "mfma") and vd & cons.src:
            n = max(n, 1)
        if prod.is_dot and cons.kind != "salu" and (vd & (cons.src | cons.dst)):
            if not (cons.op == prod.op and not (vd & (cons.src - cons.dst))):
                n = max(n, 3)
        if cons.op.startswith("v_permlane") and vd & cons.src:
            n = max(n, 2)
        if (cons.op.startswith("v_readfirstlane") or cons.op.startswith("v_readlane")) and vd & cons.src:
            n = max(n, 1)
        if sd:
            if cons.kind == "vmem" and sd & cons.src:
                n = max(n, 5)
            if cons.kind in ("valu", "mfma") and sd & cons.src:
                n = max(n, 2)
            if cons.kind == "salu" and sd & cons.src:
                n = max(n, 2)
    if prod.kind == "salu":
        if ("s", "m0") in sd and cons.kind == "vmem" and ("s", "m0") in cons.src:
            n = max(n, 1)
    if prod.kind == "vmem" and getattr(prod, "wide_store", False):
        if cons.kind in ("valu", "mfma", "ds", "vmem") and prod.store_data & cons.dst:
            n = max(n, 2)
    return n


def pad_hazards(lines):
    out = []
    hist = []
    pos = 0
    for ln in lines:
        if ln.startswith(";") or ln.endswith(":") or ln.startswith("."):
            out.append(ln)
            continue
        ins = Ins(ln)
        req = 0
        for p, ppos in hist:
            k = need(p, ins)
            if k:
                have = pos - ppos
                req = max(req, k - have)
        while req > 0:
            k = min(req, 16)
            out.append("s_nop %d" % (k - 1))
            pos += k
            req -= k
        out.append(ln)
        pos += ins.states
        hist.append((ins, pos))
        hist = [(p, pp) for p, pp in hist if pos - pp < 13]
    return out
```

```python
import sys, struct, math
from asmlib import Stream, pad_hazards

KNAME = "recurrent_scan__linear_attn_block__dense_activation_gelu__prompt_kernel"


def f32(x):
    return "0x%08x" % struct.unpack("<I", struct.pack("<f", x))[0]


LOG2E = 1.4426950408889634
GC0 = -2.0 * LOG2E * math.sqrt(2.0 / math.pi)
GC1 = GC0 * 0.044715

TOKBLK = 144 * 1024
KVO = 0xA00000
WS_BYTES = KVO + 0x10000
FLAG_OFF = 1152

UNIT = 8192
MISC = 18 * UNIT
ST, RST, NMR, CS, BIAS, KVR = 0, 2048, 2560, 3072, 4096, 8192
PY, PS = 32768, 98304

SX, SWQ, SW1, SW2, SWO, SWS, SOUT, SDBG, SB1, SB2 = 8, 12, 16, 20, 24, 28, 32, 36, 40, 44
sW, sWL, sRB, sG, sXB = 48, 49, 50, 51, 52
sCOL = [53, 54, 55, 56]
sST = [57, 58, 59, 60]
sTMP, sONE, sC1, sL2E, sEPS = 61, 62, 63, 64, 65
sTP, sCB, sFLG, sSPIN = 66, 67, 68, 69
sM0, sMINE = 70, 72
sAB, sKVA, sT2, sT3 = 74, 75, 76, 77
sLO = 78
sM1 = 80
sEX = 82
sTS = 84


def srd(r):
    return "s[%d:%d]" % (r, r + 3)


def vr(a, n=4):
    return "v[%d:%d]" % (a, a + n - 1)


vLANE, vXD, vAD, vBD, vHD, vW2D, vSTO = 1, 2, 3, 4, 5, 6, 7
vW = [8, 9, 10, 11]
vX = [12, 13, 14, 15]
WF = 16
ACC = {"A": 32, "B": 48, "C": 64}
CSA, SEL = 80, 84
CB = [(88, 92), (96, 100)]
OUTR = [104, 108]
T, P = 112, 116
vR, vN, vC0, vMS, vS0, vS1, vMS2, vTMP = 120, 121, 122, 123, 124, 125, 126, 127
XR = 128
vPOLL = 232

PF = 2


class Opt:
    stamps = False


class Fill:
    def __init__(self):
        self.q = []

    def add(self, fn, cost=1.0):
        self.q.append((fn, cost))

    def ins(self, w, s, cost=1.0):
        self.add(lambda: w.e(s), cost)

    def pull(self, budget):
        while self.q and budget > 0:
            fn, cost = self.q.pop(0)
            fn()
            budget -= cost

    def drain(self):
        self.pull(1e9)


def dma(w, srd_r, voff, sbase, imm, unit, tag):
    w.e("s_add_u32 m0, s%d, %d" % (sWL, unit * UNIT))
    if sbase is None:
        w.e("s_mov_b32 s%d, %d" % (sTMP, imm))
    else:
        w.e("s_add_u32 s%d, s%d, %d" % (sTMP, sbase, imm))
    w.vmem("buffer_load_dwordx4 v%d, %s, s%d offen lds" % (voff, srd(srd_r), sTMP), tag)


P2_U = [1, 4, 2, 5, 3, 0, 6]


def w2_dma(w, m, kq):
    unit = 4 * (m % 4) + kq
    if m < 7:
        dma(w, SW2, vW2D, None, (448 * kq + 64 * P2_U[m]) * 1024, unit, "W2_%d" % m)
    else:
        dma(w, SWO, vW2D, None, (128 * kq + 64 * (m - 7)) * 1024, unit, "W2_%d" % m)


def stamp(w, i):
    if Opt.stamps:
        w.e("s_memrealtime s[%d:%d]" % (sTS + 2 * i, sTS + 2 * i + 1))


_lbl = [0]


def label(p):
    _lbl[0] += 1
    return "L_%s_%d" % (p, _lbl[0])


def poll_issue(w, data, vaddr):
    l = label("pi")
    w.e("s_cmp_lg_u32 s%d, 0\ns_cbranch_scc1 %s" % (sW, l))
    w.e("buffer_load_dwordx4 %s, v%d, %s, 0 offen sc1" % (vr(data), vaddr, srd(SWS)))
    w.e(l + ":")
    w.vm.append("POLLMARK")


def poll_check(w, data, vaddr, tq, tk_mine, tk_all):
    n = w.pop_mark("POLLMARK")
    l, lp, ok = label("pc"), label("pl"), label("po")
    w.e("s_cmp_lg_u32 s%d, 0\ns_cbranch_scc1 %s" % (sW, l))
    w.e("s_mov_b32 s%d, 0" % sSPIN)
    if n is not None:
        w.e("s_waitcnt vmcnt(%d)" % n)
    w.e(lp + ":")
    w.e("v_min_u32 v%d, v%d, v%d" % (data, data, data + 2))
    w.e("v_min_u32 v%d, v%d, v%d" % (data + 1, data + 1, data + 3))
    w.e("v_cmp_le_u32 s[%d:%d], %d, v%d" % (sM0, sM0 + 1, tq, data))
    w.e("v_cmp_le_u32 s[%d:%d], %d, v%d" % (sM1, sM1 + 1, max(tk_mine, tk_all), data + 1))
    if tk_all:
        w.e("s_orn2_b64 s[%d:%d], s[%d:%d], s[%d:%d]" % (sM0, sM0 + 1, sM0, sM0 + 1, sMINE, sMINE + 1))
        w.e("s_and_b64 s[%d:%d], s[%d:%d], s[%d:%d]" % (sM0, sM0 + 1, sM0, sM0 + 1, sM1, sM1 + 1))
    else:
        w.e("s_and_b64 s[%d:%d], s[%d:%d], s[%d:%d]" % (sM0, sM0 + 1, sM0, sM0 + 1, sM1, sM1 + 1))
        w.e("s_orn2_b64 s[%d:%d], s[%d:%d], s[%d:%d]" % (sM0, sM0 + 1, sM0, sM0 + 1, sMINE, sMINE + 1))
    w.e("s_cmp_eq_u64 s[%d:%d], -1\ns_cbranch_scc1 %s" % (sM0, sM0 + 1, ok))
    w.e("s_add_u32 s%d, s%d, 1\ns_cmp_ge_u32 s%d, 0x40000\ns_cbranch_scc1 %s" % (sSPIN, sSPIN, sSPIN, ok))
    w.e("buffer_load_dwordx4 %s, v%d, %s, 0 offen sc1" % (vr(data), vaddr, srd(SWS)))
    w.e("s_waitcnt vmcnt(0)\ns_branch %s" % lp)
    w.e(ok + ":")
    w.e(l + ":")


def publish(w, val, vtmp):
    l = label("pub")
    w.e("s_cmp_lg_u32 s%d, 0\ns_cbranch_scc1 %s" % (sW, l))
    w.e("v_mov_b32 v%d, %d" % (vtmp, val))
    w.e("s_mov_b64 exec, 1")
    w.e("buffer_store_dword v%d, off, %s, s%d sc1" % (vtmp, srd(SWS), sFLG))
    w.e("s_mov_b64 exec, -1")
    w.e(l + ":")


def epi_group_reads(w, F, kind, tile, i, st):
    c, b = CB[st]
    if kind in ("gelu", "phi"):
        F.add(lambda: w.lds("ds_read_b128 %s, v%d offset:%d" % (vr(c), vMS, CS + tile * 128 + 32 * i), "g%d" % st), 0.5)
        if kind == "gelu":
            F.add(lambda: w.lds("ds_read_b128 %s, v%d offset:%d" % (vr(b), vMS, BIAS + tile * 128 + 32 * i), "g%d" % st), 0.5)
    else:
        F.add(lambda: w.lds("ds_read_b128 %s, v%d offset:%d" % (vr(c), vTMP, RST + 32 * i), "g%d" % st), 0.5)
        F.add(lambda: w.lds("ds_read_b128 %s, v%d offset:%d" % (vr(b), vTMP, NMR + 32 * i), "g%d" % st), 0.5)


def epi_group(w, F, kind, a, st, o, cs=None):
    c, b = CB[st]
    F.add(lambda: w.wait(lg="g%d" % st), 0.25)
    R = range(4)
    if kind == "gelu":
        for j in R: F.ins(w, "v_fma_f32 v%d, v%d, v%d, v%d" % (b + j, vN, c + j, b + j))
        for j in R: F.ins(w, "v_fma_f32 v%d, v%d, v%d, v%d" % (T + j, a + j, vR, b + j))
        for j in R: F.ins(w, "v_mul_f32 v%d, v%d, v%d" % (P + j, T + j, T + j))
        for j in R: F.ins(w, "v_fma_f32 v%d, v%d, s%d, v%d" % (P + j, P + j, sC1, vC0))
        for j in R: F.ins(w, "v_mul_f32 v%d, v%d, v%d" % (P + j, T + j, P + j))
        for j in R: F.ins(w, "v_exp_f32 v%d, v%d" % (P + j, P + j), 2)
        for j in R: F.ins(w, "v_add_f32 v%d, 1.0, v%d" % (P + j, P + j))
        for j in R: F.ins(w, "v_rcp_f32 v%d, v%d" % (P + j, P + j), 2)
        for j in R: F.ins(w, "v_mul_f32 v%d, v%d, v%d" % (T + j, T + j, P + j))
    elif kind in ("phi", "k"):
        if kind == "phi":
            for j in R: F.ins(w, "v_fma_f32 v%d, v%d, v%d, s%d" % (b + j, vN, c + j, sEPS))
            for j in R: F.ins(w, "v_fma_f32 v%d, v%d, v%d, v%d" % (T + j, a + j, vR, b + j))
        else:
            for j in R: F.ins(w, "v_fma_f32 v%d, v%d, v%d, s%d" % (b + j, b + j, cs, sEPS))
            for j in R: F.ins(w, "v_fma_f32 v%d, v%d, v%d, v%d" % (T + j, a + j, c + j, b + j))
        for j in R: F.ins(w, "v_mul_f32 v%d, s%d, v%d" % (P + j, sL2E, T + j))
        for j in R: F.ins(w, "v_min_f32 v%d, 0, v%d" % (P + j, P + j))
        for j in R: F.ins(w, "v_exp_f32 v%d, v%d" % (P + j, P + j), 2)
        for j in R: F.ins(w, "v_max_f32 v%d, s%d, v%d" % (T + j, sEPS, T + j))
        for j in R: F.ins(w, "v_add_f32 v%d, v%d, v%d" % (T + j, T + j, P + j))
    elif kind == "v":
        for j in R: F.ins(w, "v_mul_f32 v%d, v%d, v%d" % (b + j, b + j, cs))
        for j in R: F.ins(w, "v_fma_f32 v%d, v%d, v%d, v%d" % (T + j, a + j, c + j, b + j))
    F.ins(w, "v_cvt_pk_bf16_f32 v%d, v%d, v%d" % (o, T, T + 1))
    F.ins(w, "v_cvt_pk_bf16_f32 v%d, v%d, v%d" % (o + 1, T + 2, T + 3))


def epi_swapped(w, F, kind, acc, tile, groups, sst, tag):
    epi_group_reads(w, F, kind, tile, groups[0], 0)
    for n, i in enumerate(groups):
        if n + 1 < len(groups):
            epi_group_reads(w, F, kind, tile, groups[n + 1], (n + 1) & 1)
        ob = OUTR[(i >> 1) & 1]
        epi_group(w, F, kind, acc + 4 * i, n & 1, ob + 2 * (i & 1))
        if i & 1:
            F.add(lambda ob=ob, i=i: w.vmem("buffer_store_dwordx4 %s, v%d, %s, s%d offen offset:%d sc1"
                                             % (vr(ob), vSTO, srd(SWS), sst, 1024 * (i >> 1)), tag), 2)


def stats_finish(w, F, kv):
    a, b = CB[0]
    F.add(lambda: w.lds("ds_read2_b32 %s, v%d offset0:0 offset1:32" % (vr(a, 2), vS0), "st"), 0.5)
    F.add(lambda: w.lds("ds_read2_b32 %s, v%d offset0:0 offset1:32" % (vr(b, 2), vS1), "st"), 0.5)
    F.add(lambda: w.wait(lg="st"), 0.25)
    F.ins(w, "v_add_f32 v%d, v%d, v%d" % (a, a, a + 1))
    F.ins(w, "v_add_f32 v%d, v%d, v%d" % (b, b, b + 1))
    F.ins(w, "v_mul_f32 v%d, %s, v%d" % (a, f32(1.0 / 512), a))
    F.ins(w, "v_mul_f32 v%d, %s, v%d" % (b, f32(1.0 / 512), b))
    F.ins(w, "v_fma_f32 v%d, -v%d, v%d, v%d" % (b, a, a, b))
    F.ins(w, "v_max_f32 v%d, 0, v%d" % (b, b))
    F.ins(w, "v_add_f32 v%d, %s, v%d" % (b, f32(1e-5), b))
    F.ins(w, "v_rsq_f32 v%d, v%d" % (vR, b), 2)
    F.ins(w, "v_mul_f32 v%d, -v%d, v%d" % (vN, a, vR))
    if kv:
        F.ins(w, "v_and_b32 v%d, 31, v%d" % (a, vLANE))
        F.ins(w, "v_lshlrev_b32 v%d, 2, v%d" % (a, a))
        F.ins(w, "s_and_b32 s%d, s%d, 3" % (sT2, sW), 0.5)
        F.ins(w, "s_lshl_b32 s%d, s%d, 7" % (sT2, sT2), 0.5)
        F.ins(w, "s_add_u32 s%d, s%d, %d" % (sT3, sT2, MISC), 0.5)
        F.ins(w, "v_add_u32 v%d, s%d, v%d" % (a, sT3, a))
        F.ins(w, "v_add_u32 v%d, s%d, v%d" % (vTMP, sT2, vMS))
        F.add(lambda: w.lds("ds_write_b32 v%d, v%d offset:%d" % (a, vR, RST), "rs"), 0.5)
        F.add(lambda: w.lds("ds_write_b32 v%d, v%d offset:%d" % (a, vN, NMR), "rs"), 0.5)


def phase1(kv, ch):
    w = Stream()
    F = Fill()
    w.c("==== phase 1, %s, column half %d" % ("kv workgroup" if kv else "q workgroup", ch))
    req = []
    s0, p0 = (SWQ, vAD) if kv else (SW1, vBD), None
    pitch = {SWQ: 3072, SW1: 3584}

    def wreq(name, srd_r, voff, col, row0, need, rel):
        req.append([name, lambda u: dma(w, srd_r, voff, col, row0 * pitch[srd_r], u, name), need, rel])

    for c in range(8):
        wreq("W0_%d" % c, s0[0], s0[1], sCOL[0], 64 * c, c, c + 2)
        for hx in range(2):
            req.append(["X%d_%d" % (c, hx), lambda u, c=c, hx=hx: dma(w, SX, vXD, sXB, hx * 65536 + c * 128, u, "X%d_%d" % (c, hx)), c, c + 1])
    if kv:
        passes = [("A", False, 0), ("B", False, 2), ("A", True, 4)]
        for c in range(8): wreq("W1_%d" % c, SWQ, vAD, sCOL[1], 64 * c, 8 + c // 2, 8 + c // 2 + 2)
        for c in range(8): wreq("W2p_%d" % c, SW1, vBD, sCOL[2], 64 * c, 12 + c // 2, 12 + c // 2 + 2)
        nb = 16
    else:
        passes = [("A", True, 0), ("B", True, 2), ("C", True, 4), ("A", True, 6)]
        for c in range(8): wreq("W1_%d" % c, SW1, vBD, sCOL[1], 64 * c, 8 + c // 2, 8 + c // 2 + 2)
        for c in range(2):
            for h in range(2):
                nm = "HC%d_%d" % (c, h)
                req.append([nm, lambda u, c=c, h=h, nm=nm: dma(w, SW1, vHD, sCOL[2], (256 * h + 128 * c) * 3584, u, nm), 12 + c, 12 + c + 2])
        req.append(["XCH0", None, 14, 17])
        req.append(["XCH1", None, 14, 17])
        for c in range(8): wreq("W3_%d" % c, SWQ, vAD, sCOL[3], 64 * c, 14 + c // 2, 14 + c // 2 + 2)
        nb = 18
    n1 = len(req)
    start = (-n1) % 18
    for m in range(4):
        for kq in range(4):
            req.append(["W2_%d" % m, lambda u, m=m, kq=kq: w2_dma(w, m, kq), 99, 999])
    unit_of = {}
    issue_at = {}
    for n, r in enumerate(req):
        u = (start + n) % 18
        if n < n1:
            unit_of[r[0]] = u
        else:
            assert u == n - n1
        at = -1 if n < 18 else req[n - 18][3]
        assert at < r[2] or (r[1] is None and at <= r[2]), (r[0], at, r[2])
        issue_at.setdefault(at, []).append((r, u))
    for c in range(8):
        assert unit_of["X%d_1" % c] == unit_of["X%d_0" % c] + 1
    if not kv:
        assert unit_of["XCH1"] == unit_of["XCH0"] + 1

    def issue(b):
        for r, u in issue_at.pop(b, []):
            if r[1] is not None:
                r[1](u)

    steps = []
    for pi, (acc, swapped, tile0) in enumerate(passes):
        hc = (not kv) and pi == 2
        n = 16 if hc else 32
        for s in range(n):
            d = dict(pi=pi, s=s, n=n, acc=ACC[acc], swapped=swapped, tile=tile0 + (0 if hc else ch), hc=hc)
            if pi == 0:
                d["bar"] = s // 4
                d["first"] = s % 4 == 0
                d["units"] = ["W0_%d" % (s // 4), "X%d_0" % (s // 4), "X%d_1" % (s // 4)]
                d["off"] = unit_of["W0_%d" % (s // 4)] * UNIT
            elif hc:
                d["bar"] = 12 + s // 8
                d["first"] = s % 8 == 0
                d["units"] = ["HC%d_0" % (s // 8), "HC%d_1" % (s // 8)]
                d["off"] = unit_of["HC%d_%d" % (s // 8, ch)] * UNIT + ((s % 8) // 4) * 4096
            else:
                nm = {1: "W1_%d", 2: "W2p_%d", 3: "W3_%d"}[pi]
                b0 = {1: 8, 2: 12, 3: 14}[pi]
                d["bar"] = b0 + s // 8
                d["first"] = s % 8 == 0
                d["units"] = [nm % (2 * (s // 8)), nm % (2 * (s // 8) + 1)]
                d["off"] = unit_of[nm % (s // 4)] * UNIT
            d["x"] = XR + 4 * (s + (16 * ch if hc else 0))
            steps.append(d)
    NS = len(steps)

    win = {"W": 0, "X": 0}

    def set_window(grp, regs, off):
        want = off // 57344 * 57344
        if want != win[grp]:
            for r in regs:
                w.e("v_add_u32 v%d, %d, v%d" % (r, (want - win[grp]) & 0xFFFFFFFF, r) if want > win[grp]
                    else "v_subrev_u32 v%d, %d, v%d" % (r, win[grp] - want, r))
            win[grp] = want
        return off - want

    hooks_pre = {}
    hooks_post = {}
    pre_tags = {}

    def barrier(b, units):
        for fn in hooks_pre.get(b, []): fn()
        ex = pre_tags.get(b, ((), ()))
        w.wait(vm=tuple(units) + tuple(ex[0]), lg=("xr", "csadd", "stw", "xchw", "xchr", "kvadd") + tuple(ex[1]))
        w.e("s_barrier")
        for fn in hooks_post.get(b, []): fn()
        issue(b)

    def reads(i):
        d = steps[i]
        if d["first"]:
            barrier(d["bar"], d["units"])
            if d["pi"] == 0:
                c = d["s"] // 4
                o = set_window("X", vX, unit_of["X%d_0" % c] * UNIT) if True else 0
                for p in range(4):
                    w.lds("ds_read_b128 %s, v%d offset:%d" % (vr(XR + 4 * (4 * c + p)), vX[p], o), "xr")
        p = d["s"] % 4
        fr = WF + 4 * (i % 4)
        if d["hc"]:
            o = set_window("X", vX, d["off"])
            w.lds("ds_read_b64_tr_b16 %s, v%d offset:%d" % (vr(fr, 2), vX[p], o), "f%d" % i)
            w.lds("ds_read_b64_tr_b16 %s, v%d offset:%d" % (vr(fr + 2, 2), vX[p], o + 256), "f%d" % i)
        else:
            o = set_window("W", vW, d["off"])
            w.lds("ds_read_b64_tr_b16 %s, v%d offset:%d" % (vr(fr, 2), vW[p], o), "f%d" % i)
            w.lds("ds_read_b64_tr_b16 %s, v%d offset:%d" % (vr(fr + 2, 2), vW[p], o + 512), "f%d" % i)

    def init_signal():
        l = label("ini")
        w.e("s_cmp_lg_u32 s%d, 0\ns_cbranch_scc1 %s\ns_cmp_ge_u32 s2, 8\ns_cbranch_scc1 %s" % (sW, l, l))
        w.e("v_mov_b32 v%d, 1\ns_mov_b64 exec, 1" % T)
        w.e("buffer_atomic_add v%d, off, %s, 0" % (T, srd(SDBG)))
        w.e("s_mov_b64 exec, -1\n%s:" % l)

    def bias_to_lds():
        w.wait(vm="bias")
        w.e("v_lshlrev_b32 v%d, 16, v%d" % (P, P))
        w.e("v_lshlrev_b32 v%d, 2, v0\nv_add_u32 v%d, %d, v%d" % (P + 1, P + 1, MISC + BIAS, P + 1))
        w.lds("ds_write_b32 v%d, v%d" % (P + 1, P), "stw")

    def init_poll_issue():
        l = label("ip")
        w.e("s_cmp_lg_u32 s%d, 0\ns_cbranch_scc1 %s" % (sW, l))
        w.e("buffer_load_dword v%d, off, %s, 0 sc1" % (P + 2, srd(SDBG)))
        w.e(l + ":")
        w.vm.append("IPMARK")

    def init_poll_check():
        n = w.pop_mark("IPMARK")
        l, lp = label("ic"), label("il")
        w.e("s_cmp_lg_u32 s%d, 0\ns_cbranch_scc1 %s" % (sW, l))
        w.e("s_mov_b32 s%d, 0" % sSPIN)
        if n is not None:
            w.e("s_waitcnt vmcnt(%d)" % n)
        w.e(lp + ":")
        w.e("v_readfirstlane_b32 s%d, v%d" % (sT2, P + 2))
        w.e("s_cmp_ge_u32 s%d, 8\ns_cbranch_scc1 %s" % (sT2, l))
        w.e("s_add_u32 s%d, s%d, 1\ns_cmp_ge_u32 s%d, 0x40000\ns_cbranch_scc1 %s" % (sSPIN, sSPIN, sSPIN, l))
        w.e("buffer_load_dword v%d, off, %s, 0 sc1" % (P + 2, srd(SDBG)))
        w.e("s_waitcnt vmcnt(0)\ns_branch %s" % lp)
        w.e(l + ":")

    hooks_pre[0] = [bias_to_lds]
    hooks_post[0] = [init_signal, lambda: stamp(w, 1)]
    hooks_post[5] = [init_poll_issue]
    hooks_pre[7] = [init_poll_check]

    w.vm.append("bias")
    issue(-1)
    for i in range(PF):
        reads(i)

    events = {}

    def at(i, fn):
        events.setdefault(i, []).append(fn)

    rate = [0.0] * NS
    pstart = [min(i for i in range(NS) if steps[i]["pi"] == p) for p in range(len(passes))]

    def stats_chunk(c):
        def fn():
            w.wait(lg="xr")
            for k in range(16):
                x = XR + 16 * c + k
                acc = vS0 if k % 2 == 0 else vS1
                if ch == 0:
                    w.e("v_dot2c_f32_bf16 v%d, s%d, v%d" % (acc, sONE, x))
                else:
                    w.e("v_dot2c_f32_bf16 v%d, v%d, v%d" % (acc, x, x))
        return fn

    for c in range(8):
        at(4 * c if c < 7 else 27, stats_chunk(c))

    def stats_write():
        w.e("v_add_f32 v%d, v%d, v%d" % (vS0, vS0, vS1))
        w.e("v_lshlrev_b32 v%d, 2, v0\nv_add_u32 v%d, %d, v%d" % (vS1, vS1, MISC + ST, vS1))
        w.lds("ds_write_b32 v%d, v%d" % (vS1, vS0), "stw")
        w.e("v_and_b32 v%d, 0xdf, v0\nv_lshlrev_b32 v%d, 2, v%d" % (vS0, vS0, vS0))
        w.e("v_add_u32 v%d, %d, v%d\nv_add_u32 v%d, %d, v%d" % (vS1, MISC + ST + 1024, vS0, vS0, MISC + ST, vS0))

    at(28, stats_write)

    def cs_add(tile):
        return lambda: w.lds("ds_add_f32 v%d, v%d offset:%d" % (vMS2, CSA, CS + tile * 128), "csadd")

    for p in range(len(passes)):
        at(pstart[p] + steps[pstart[p]]["n"] - 3, cs_add(steps[pstart[p]]["tile"]))

    if not kv:
        def q_p1():
            stats_finish(w, F, False)
            epi_swapped(w, F, "gelu", ACC["A"], ch, [0, 1, 2, 3], sST[0], "stE")

        def hc_addr():
            w.e("v_lshrrev_b32 v%d, 5, v%d\nv_lshlrev_b32 v%d, 9, v%d" % (T, vLANE, T, T))
            w.e("v_bfe_u32 v%d, v%d, 2, 2\nv_lshl_add_u32 v%d, v%d, 6, v%d" % (T + 1, vLANE, T, T + 1, T))
            w.e("v_bfe_u32 v%d, v%d, 4, 1\nv_lshl_add_u32 v%d, v%d, 5, v%d" % (T + 1, vLANE, T, T + 1, T))
            w.e("v_and_b32 v%d, 3, v%d\nv_lshl_add_u32 v%d, v%d, 3, v%d" % (T + 1, vLANE, T, T + 1, T))
            w.e("s_and_b32 s%d, s%d, 3" % (sT2, sW))
            for p in range(4):
                w.e("s_xor_b32 s%d, s%d, %d\ns_lshl_b32 s%d, s%d, 10" % (sT3, sT2, p, sT3, sT3))
                w.e("v_add_u32 v%d, s%d, v%d" % (vX[p], sT3, T))
            win["X"] = 0

        at(pstart[1], hc_addr)
        at(pstart[1], q_p1)
        at(pstart[2], lambda: epi_swapped(w, F, "gelu", ACC["B"], 2 + ch, [0, 1, 2, 3], sST[1], "stE"))
        xch = unit_of["XCH0"] * UNIT
        send = ACC["C"] + (8 if ch == 0 else 0)
        keep = ACC["C"] + (0 if ch == 0 else 8)

        def xch_write():
            w.e("v_lshlrev_b32 v%d, 4, v0\nv_add_u32 v%d, %d, v%d" % (vS0, vS0, xch, vS0))
            w.lds("ds_write_b128 v%d, %s" % (vS0, vr(send)), "xchw")
            w.lds("ds_write_b128 v%d, %s offset:8192" % (vS0, vr(send + 4)), "xchw")
            w.e("v_xor_b32 v%d, 256, v0\nv_lshlrev_b32 v%d, 4, v%d\nv_add_u32 v%d, %d, v%d" % (vS1, vS1, vS1, vS1, xch, vS1))

        at(pstart[3] + 1, xch_write)

        def xch_read():
            w.lds("ds_read_b128 %s, v%d" % (vr(send), vS1), "xchr")
            w.lds("ds_read_b128 %s, v%d offset:8192" % (vr(send + 4), vS1), "xchr")
            F.add(lambda: w.wait(lg="xchr"), 0.25)
            for j in range(8):
                F.ins(w, "v_add_f32 v%d, v%d, v%d" % (keep + j, keep + j, send + j))
            epi_swapped(w, F, "gelu", ACC["C"], 4, [2 * ch, 2 * ch + 1], sST[2], "stC")

        hooks_post[15] = [xch_read]
        pre_tags[17] = (("stE",), ())
        hooks_post[17] = [lambda: publish(w, 1, vS0)]
        for i in range(pstart[1], pstart[2]): rate[i] = 6.5
        for i in range(pstart[2], NS): rate[i] = 8.0
        last = ("phi", ACC["A"], 6 + ch, sST[3])
    else:
        PK, B1, B2, D1, D2 = 104, 64, 72, ACC["B"], 88

        def kv_p1():
            stats_finish(w, F, True)
            F.add(lambda: w.lds("ds_read_b32 v%d, v%d offset:%d" % (vS0, vMS2, CS + ch * 128), "csk"), 0.5)
            epi_group_reads(w, F, "k", 0, 0, 0)
            F.add(lambda: w.wait(lg="csk"), 0.25)
            for i in range(4):
                if i < 3: epi_group_reads(w, F, "k", 0, i + 1, (i + 1) & 1)
                epi_group(w, F, "k", ACC["A"] + 4 * i, i & 1, PK + 2 * i, cs=vS0)

        def kv_p2():
            F.add(lambda: w.lds("ds_read_b32 v%d, v%d offset:%d" % (vS1, vMS2, CS + (2 + ch) * 128), "csk"), 0.5)
            epi_group_reads(w, F, "v", 0, 0, 0)
            F.add(lambda: w.wait(lg="csk"), 0.25)
            for i in range(4):
                if i < 3: epi_group_reads(w, F, "v", 0, i + 1, (i + 1) & 1)
                epi_group(w, F, "v", ACC["B"] + 4 * i, i & 1, P, cs=vS1)
                for j in range(2):
                    F.ins(w, "v_cndmask_b32 v%d, v%d, v%d, s[%d:%d]" % (B1 + 2 * i + j, vC0, P + j, sLO, sLO + 1))
                    F.ins(w, "v_cndmask_b32 v%d, v%d, v%d, s[%d:%d]" % (B2 + 2 * i + j, P + j, vC0, sLO, sLO + 1))
            for s in range(2):
                F.ins(w, "v_mfma_f32_32x32x16_bf16 %s, %s, %s, %s" % (vr(D1, 16), vr(PK + 4 * s), vr(B1 + 4 * s), "0" if s == 0 else vr(D1, 16)), 8)
            for s in range(2):
                F.ins(w, "v_mfma_f32_32x32x16_bf16 %s, %s, %s, %s" % (vr(D2, 16), vr(PK + 4 * s), vr(B2 + 4 * s), "0" if s == 0 else vr(D2, 16)), 8)
            F.ins(w, "v_lshlrev_b32 v%d, 2, v%d" % (T, vLANE))
            F.ins(w, "v_add_u32 v%d, %d, v%d" % (T, MISC + KVR + ch * 4096, T))
            F.ins(w, "v_mov_b32 v%d, %s" % (vC0, f32(GC0)), 6)
            for r in range(8):
                F.add(lambda r=r: w.lds("ds_add_f32 v%d, v%d offset:%d" % (T, D1 + r, 256 * r), "kvadd"), 1)
            for r in range(8):
                F.add(lambda r=r: w.lds("ds_add_f32 v%d, v%d offset:%d" % (T, D2 + 8 + r, 2048 + 256 * r), "kvadd"), 1)

        def kv_flush():
            assert not F.q, "kv fillers must be drained before the reduction barrier"

        def kv_atomics():
            w.e("s_lshr_b32 s%d, s%d, 1\ns_and_b32 s%d, s%d, 1" % (sT2, sW, sT3, sW))
            w.e("v_and_b32 v%d, 7, v%d\nv_lshlrev_b32 v%d, 8, v%d" % (T, vLANE, T, T))
            w.e("v_lshrrev_b32 v%d, 3, v%d\nv_lshl_add_u32 v%d, v%d, 2, v%d" % (T + 1, vLANE, T, T + 1, T))
            w.e("s_lshl_b32 s%d, s%d, 11" % (sTMP, sT2))
            w.e("s_lshl_b32 s%d, s%d, 7\ns_add_u32 s%d, s%d, s%d" % (sT3, sT3, sSPIN, sTMP, sT3))
            w.e("s_and_b32 s%d, s%d, 1\ns_lshl_b32 s%d, s%d, 6\ns_add_u32 s%d, s%d, s%d" % (sT2, sT2, sT2, sT2, sSPIN, sSPIN, sT2))
            w.e("s_add_u32 s%d, s%d, %d" % (sSPIN, sSPIN, MISC + KVR))
            w.e("v_add_u32 v%d, s%d, v%d" % (T, sSPIN, T))
            w.lds("ds_read2_b32 %s, v%d offset0:0 offset1:8" % (vr(P, 2), T), "kvr")
            w.e("v_and_b32 v%d, 7, v%d\nv_lshlrev_b32 v%d, 8, v%d" % (T + 1, vLANE, T + 1, T + 1))
            w.e("v_lshrrev_b32 v%d, 4, v%d\nv_lshl_add_u32 v%d, v%d, 11, v%d" % (T + 2, vLANE, T + 1, T + 2, T + 1))
            w.e("v_bfe_u32 v%d, v%d, 3, 1\nv_lshl_add_u32 v%d, v%d, 7, v%d" % (T + 3, vLANE, T + 1, T + 3, T + 1))
            w.e("v_and_b32 v%d, 1, v%d\nv_xor_b32 v%d, 1, v%d\nv_lshl_add_u32 v%d, v%d, 6, v%d" % (T + 3, T + 2, T + 3, T + 3, T + 1, T + 3, T + 1))
            w.e("v_add_u32 v%d, %d, v%d" % (T + 1, MISC + KVR, T + 1))
            w.lds("ds_read_b32 v%d, v%d" % (P + 2, T + 1), "kvr")
            w.e("s_lshl_b32 s%d, s%d, 2\ns_add_u32 s%d, s%d, s%d\ns_add_u32 s%d, s%d, s%d" % (sT3, sT3, sTMP, sTMP, sT3, sTMP, sTMP, sKVA))
            w.e("v_lshlrev_b32 v%d, 2, v%d" % (T, vLANE))
            w.e("v_and_b32 v%d, 15, v%d\nv_lshlrev_b32 v%d, 2, v%d\nv_lshl_add_u32 v%d, v%d, 11, v%d" % (T + 3, vLANE, T + 3, T + 3, T + 3, T + 2, T + 3))
            w.wait(lg="kvr")
            w.vmem("buffer_atomic_add_f32 v%d, v%d, %s, s%d offen" % (P, T, srd(SWS), sTMP), "kva")
            w.vmem("buffer_atomic_add_f32 v%d, v%d, %s, s%d offen offset:256" % (P + 1, T, srd(SWS), sTMP), "kva")
            l = label("z")
            w.e("s_cmp_lg_u32 s%d, 0\ns_cbranch_scc1 %s" % (sW, l))
            w.e("buffer_atomic_add_f32 v%d, v%d, %s, s%d offen offset:1024" % (P + 2, T + 3, srd(SWS), sKVA))
            w.e(l + ":")

        at(pstart[1], kv_p1)
        at(pstart[2], kv_p2)
        hooks_pre[15] = [kv_flush]
        hooks_post[15] = [kv_atomics]
        for i in range(pstart[1], pstart[2]): rate[i] = 6.5
        for i in range(pstart[2], NS): rate[i] = 8.0
        last = ("gelu", ACC["A"], 4 + ch, sST[2])

    for i, d in enumerate(steps):
        fr = WF + 4 * (i % 4)
        w.wait(lg=("f%d" % i,) + (("xr",) if d["pi"] == 0 and d["s"] % 4 == 0 else ()))
        a, b = (fr, d["x"]) if d["swapped"] else (d["x"], fr)
        w.e("v_mfma_f32_32x32x16_bf16 %s, %s, %s, %s" % (vr(d["acc"], 16), vr(a), vr(b), "0" if d["s"] == 0 else vr(d["acc"], 16)))
        if d["s"] % 4 == 0:
            w.e("v_mfma_f32_16x16x32_bf16 %s, %s, %s, %s" % (vr(CSA), vr(SEL), vr(fr), "0" if d["s"] == 0 else vr(CSA)))
        for fn in events.get(i, []): fn()
        if i + PF < NS:
            reads(i + PF)
        elif i + PF == NS:
            if not kv:
                F.drain()
                pre_tags[nb] = (("stE", "stC"), ())
                hooks_post[nb] = [lambda: publish(w, 2, vS0)]
            barrier(nb, [])
        F.pull(rate[i])
    F.drain()
    stamp(w, 2)
    assert sorted(issue_at.keys()) == [], issue_at.keys()
    w.e("v_lshrrev_b32 v%d, 2, v%d\nv_lshlrev_b32 v%d, 11, v%d" % (vPOLL + 4, vLANE, vPOLL + 4, vPOLL + 4))
    w.e("v_and_b32 v%d, 3, v%d\nv_lshl_add_u32 v%d, v%d, 4, v%d" % (vPOLL + 5, vLANE, vPOLL + 4, vPOLL + 5, vPOLL + 4))
    w.e("v_add_u32 v%d, %d, v%d" % (vPOLL + 4, KVO + FLAG_OFF, vPOLL + 4))
    if not kv:
        poll_issue(w, vPOLL, vPOLL + 4)
    epi_swapped(w, F, last[0], last[1], last[2], [0, 1, 2, 3], last[3], "stL")
    F.drain()
    if kv:
        w.wait_vm_all()
        w.e("s_barrier")
        publish(w, 3, T)
        poll_issue(w, vPOLL, vPOLL + 4)
    poll_check(w, vPOLL, vPOLL + 4, 1, 0, 0)
    w.wait_lg_all()
    w.e("s_branch L_phase2")
    return w


def phase2():
    w = Stream()
    vA, vWR, vKE, vKO, vPW, vPR = 2, 8, 12, 13, 14, 15
    WFR, YA, SA, KVB, AR = 16, 32, 64, 96, 128
    D = [144, 160]
    OP, G, XRES, B2R, TM = 192, 200, 208, 212, 216
    vPA = vPOLL + 4
    w.e("L_phase2:")
    w.c("==== phase 2")
    w.vm = ["old"]
    w.e("s_barrier")
    stamp(w, 3)
    w.e("v_lshlrev_b32 v%d, 4, v%d" % (vA, vLANE))

    def a_load(m, s):
        r = AR + 16 * (m % 4) + 4 * s
        if s == 0 or True:
            if m < 7:
                w.e("s_add_u32 s%d, s%d, %d" % (sTMP, sAB, 4096 * P2_U[m]))
            else:
                w.e("s_add_u32 s%d, s%d, %d" % (sTMP, sT3, 4096 * (m - 7)))
        w.vmem("buffer_load_dwordx4 %s, v%d, %s, s%d offen offset:%d sc1" % (vr(r), vA, srd(SWS), sTMP, 1024 * s), "A%d_%d" % (m, s))

    for m in range(4):
        for s in range(4):
            a_load(m, s)
    poll_issue(w, vPOLL, vPA)
    w.e("s_and_b32 s%d, s%d, 3" % (sT2, sW))
    w.e("s_mul_i32 s%d, s%d, %d\ns_sub_u32 s%d, s%d, s%d\ns_add_u32 s%d, s%d, %d" % (sT3, sT2, 20 * 1024, sT3, sAB, sT3, sT3, sT3, 112 * 1024))
    w.e("v_lshrrev_b32 v%d, 3, v0\nv_lshlrev_b32 v%d, 10, v%d" % (TM, TM, TM))
    w.e("v_and_b32 v%d, 7, v0\nv_lshlrev_b32 v%d, 4, v%d" % (TM + 1, TM + 1, TM + 1))
    w.e("v_add_u32 v%d, v%d, v%d" % (7, TM, TM + 1))
    w.e("s_lshl_b32 s%d, s%d, 16\ns_lshl_b32 s%d, s%d, 7\ns_add_u32 s%d, s%d, s%d" % (sXB, sTP, sTMP, sCB, sXB, sXB, sTMP))
    w.vmem("buffer_load_dwordx4 %s, v7, %s, s%d offen" % (vr(XRES), srd(SX), sXB), "xres")
    w.vmem("buffer_load_dwordx4 %s, v%d, %s, s%d offen" % (vr(B2R), TM + 1, srd(SB2), sTMP), "b2")
    w.e("v_lshrrev_b32 v%d, 5, v%d\nv_lshlrev_b32 v%d, 9, v%d" % (TM, vLANE, TM, TM))
    w.e("v_bfe_u32 v%d, v%d, 2, 2\nv_lshl_add_u32 v%d, v%d, 7, v%d" % (TM + 1, vLANE, TM, TM + 1, TM))
    w.e("v_bfe_u32 v%d, v%d, 3, 1\nv_lshl_add_u32 v%d, v%d, 6, v%d" % (TM + 1, vLANE, TM, TM + 1, TM))
    w.e("v_bfe_u32 v%d, v%d, 4, 1\nv_lshl_add_u32 v%d, v%d, 5, v%d" % (TM + 1, vLANE, TM, TM + 1, TM))
    w.e("v_and_b32 v%d, 3, v%d\nv_lshl_add_u32 v%d, v%d, 3, v%d" % (TM + 1, vLANE, TM, TM + 1, TM))
    w.e("s_lshl_b32 s%d, s%d, 13\nv_add_u32 v%d, s%d, v%d" % (sTMP, sT2, vWR, sTMP, TM))
    w.e("v_xor_b32 v%d, 64, v%d" % (vWR + 1, vWR))
    w.e("v_add_u32 v%d, 0x10000, v%d\nv_add_u32 v%d, 0x10000, v%d" % (vWR + 2, vWR, vWR + 3, vWR + 1))
    w.e("v_lshrrev_b32 v%d, 5, v%d" % (TM, vLANE))
    w.e("v_and_b32 v%d, 15, v%d\nv_lshl_add_u32 v%d, v%d, 4, v%d\nv_lshlrev_b32 v%d, 5, v%d" % (TM + 1, vLANE, TM + 1, TM, TM + 1, TM + 1, TM + 1))
    w.e("v_lshlrev_b32 v%d, 5, v%d\nv_add_u32 v%d, 1024, v%d" % (TM, TM, TM, TM))
    w.e("v_cndmask_b32 v%d, v%d, v%d, s[%d:%d]" % (vKE, TM, TM + 1, sLO, sLO + 1))
    w.e("v_cndmask_b32 v%d, v%d, v%d, s[%d:%d]" % (vKO, TM + 1, TM, sLO, sLO + 1))
    w.e("s_lshl_b32 s%d, s%d, 14\ns_add_u32 s%d, s%d, %d" % (sKVA, sT2, sKVA, sKVA, KVO))
    w.e("v_and_b32 v%d, 31, v%d\nv_lshrrev_b32 v%d, 5, v%d" % (TM, vLANE, TM + 1, vLANE))
    w.e("v_and_b32 v%d, 7, v%d\nv_xor_b32 v%d, v%d, v%d" % (TM + 2, vLANE, TM + 1, TM + 1, TM + 2))
    w.e("v_lshlrev_b32 v%d, 8, v%d\nv_lshl_add_u32 v%d, v%d, 4, v%d" % (TM, TM, TM, TM + 1, TM))
    w.e("s_lshr_b32 s%d, s%d, 2\ns_lshl_b32 s%d, s%d, 13\ns_lshl_b32 s%d, s%d, 14" % (sTMP, sW, sTMP, sTMP, sT2, sT2))
    w.e("s_add_u32 s%d, s%d, s%d\ns_add_u32 s%d, s%d, %d" % (sTMP, sTMP, sT2, sTMP, sTMP, PY))
    w.e("v_add_u32 v%d, s%d, v%d" % (vPW, sTMP, TM))
    w.e("v_lshrrev_b32 v%d, 3, v0\nv_and_b32 v%d, 7, v%d" % (TM, TM + 1, TM))
    w.e("v_and_b32 v%d, 7, v0\nv_lshlrev_b32 v%d, 1, v%d\nv_xor_b32 v%d, v%d, v%d" % (TM + 2, TM + 2, TM + 2, TM + 1, TM + 1, TM + 2))
    w.e("v_lshlrev_b32 v%d, 8, v%d\nv_lshl_add_u32 v%d, v%d, 4, v%d\nv_add_u32 v%d, %d, v%d" % (TM, TM, TM, TM + 1, TM, vPR, PY, TM))

    def w_reads(m, s):
        base = (m % 4) * 32768 + s * 2048
        hi = base >= 65536
        fr = WFR + 8 * (s % 2)
        for t in range(2):
            a = vWR + t + (2 if hi else 0)
            o = base - (65536 if hi else 0)
            w.lds("ds_read_b64_tr_b16 %s, v%d offset:%d" % (vr(fr + 4 * t, 2), a, o), "w%d" % s)
            w.lds("ds_read_b64_tr_b16 %s, v%d offset:%d" % (vr(fr + 4 * t + 2, 2), a, o + 1024), "w%d" % s)

    def kv_loads(h0):
        for h in range(h0, h0 + 4):
            va = vKE if h % 2 == 0 else vKO
            r = SA + 8 * (h - h0)
            w.e("s_add_u32 s%d, s%d, %d" % (sTMP, sKVA, 2048 * h))
            w.vmem("buffer_load_dwordx4 %s, v%d, %s, s%d offen sc1" % (vr(r), va, srd(SWS), sTMP), "kv%d" % h0)
            w.vmem("buffer_load_dwordx4 %s, v%d, %s, s%d offen offset:16 sc1" % (vr(r + 4), va, srd(SWS), sTMP), "kv%d" % h0)

    def kv_cvt(h0):
        w.wait(vm="kv%d" % h0)
        for h in range(h0, h0 + 4):
            r = SA + 8 * (h - h0)
            for j in range(4):
                w.e("v_cvt_pk_bf16_f32 v%d, v%d, v%d" % (KVB + 4 * h + j, r + 2 * j, r + 2 * j + 1))

    def part_write(acc, tag):
        for i in range(4):
            if i == 0:
                a = vPW
            else:
                a = TM + i
                w.e("v_xor_b32 v%d, %d, v%d" % (a, 32 * i, vPW))
            for t in range(2):
                w.lds("ds_write_b128 v%d, %s offset:%d" % (a, vr(acc + 16 * t + 4 * i), 128 * t), tag)

    def part_read(dst, tag):
        w.e("v_xor_b32 v%d, 16, v%d" % (TM, vPR))
        for k in range(4):
            w.lds("ds_read_b128 %s, v%d offset:%d" % (vr(dst + 8 * k), vPR, 16384 * k), tag)
            w.lds("ds_read_b128 %s, v%d offset:%d" % (vr(dst + 8 * k + 4), TM, 16384 * k), tag)

    def part_sum(dst):
        for j in range(8): w.e("v_add_f32 v%d, v%d, v%d" % (dst + j, dst + j, dst + 8 + j))
        for j in range(8): w.e("v_add_f32 v%d, v%d, v%d" % (dst + 16 + j, dst + 16 + j, dst + 24 + j))
        for j in range(8): w.e("v_add_f32 v%d, v%d, v%d" % (dst + j, dst + j, dst + 16 + j))

    def num_mfma(h):
        m, s = 7 + h // 4, h % 4
        w.wait(vm="A%d_%d" % (m, s))
        w.e("v_mfma_f32_32x32x16_bf16 %s, %s, %s, 0" % (vr(D[h % 2], 16), vr(KVB + 4 * h), vr(AR + 16 * (m % 4) + 4 * s)))

    def o_valu(h):
        d = D[h % 2]
        num, den = (d, d + 8) if h % 2 == 0 else (d + 8, d)
        o = OP + 4 * (h % 2)
        w.e("v_add_f32 v%d, s%d, v%d" % (den, sEPS, den))
        w.e("v_rcp_f32 v%d, v%d" % (den, den))
        for j in range(8): w.e("v_mul_f32 v%d, v%d, v%d" % (num + j, num + j, den))
        for j in range(4): w.e("v_cvt_pk_bf16_f32 v%d, v%d, v%d" % (o + j, num + 2 * j, num + 2 * j + 1))

    checks = {0: (2, 0, 0), 1: (0, 3, 0), 3: (3, 0, 3)}
    for m in range(9):
        w.c("chunk %d" % m)
        if m in checks:
            poll_check(w, vPOLL, vPA, *checks[m])
        w.wait(vm=("old", "W2_%d" % m))
        w.wait_lg_all()
        w.e("s_barrier")
        if m == 0:
            publish(w, 3, TM)
            stamp(w, 4)
        if (m + 1) in checks:
            poll_issue(w, vPOLL, vPA)
        w_reads(m, 0)
        if m == 7:
            stamp(w, 5)
            num_mfma(0)
            part_write(YA, "py")
        if m == 8:
            part_read(YA, "pyr")
        if m == 4:
            kv_cvt(0)
            kv_loads(4)
        if m == 5:
            kv_cvt(4)
        for s in range(4):
            if s < 3:
                w_reads(m, s + 1)
            if 1 <= m <= 5:
                w2_dma(w, m + 3, s)
            fr = WFR + 8 * (s % 2)
            if m < 7:
                ar = AR + 16 * (m % 4) + 4 * s
                w.wait(vm="A%d_%d" % (m, s), lg="w%d" % s)
                for t in range(2):
                    w.e("v_mfma_f32_32x32x16_bf16 %s, %s, %s, %s" % (vr(YA + 16 * t, 16), vr(fr + 4 * t), vr(ar), "0" if (m == 0 and s == 0) else vr(YA + 16 * t, 16)))
                if m + 4 <= 8:
                    a_load(m + 4, s)
            else:
                h = 4 * (m - 7) + s
                if h + 1 < 8:
                    num_mfma(h + 1)
                o_valu(h)
                w.wait(lg="w%d" % s)
                for t in range(2):
                    w.e("v_mfma_f32_32x32x16_bf16 %s, %s, %s, %s" % (vr(SA + 16 * t, 16), vr(fr + 4 * t), vr(OP + 4 * (h % 2)), "0" if h == 0 else vr(SA + 16 * t, 16)))
                if m == 8 and s == 1:
                    w.wait(vm="b2", lg="pyr")
                    part_sum(YA)
                    for j in range(4):
                        w.e("v_lshlrev_b32 v%d, 16, v%d\nv_and_b32 v%d, 0xffff0000, v%d" % (TM + 2 * j, B2R + j, TM + 2 * j + 1, B2R + j))
                    for j in range(8): w.e("v_add_f32 v%d, v%d, v%d" % (YA + j, YA + j, TM + j))
                    for j in range(8): w.e("v_mul_f32 v%d, %s, v%d" % (G + j, f32(-LOG2E), YA + j))
                    for j in range(8): w.e("v_exp_f32 v%d, v%d" % (G + j, G + j))
                    for j in range(8): w.e("v_add_f32 v%d, 1.0, v%d" % (G + j, G + j))
                    for j in range(8): w.e("v_rcp_f32 v%d, v%d" % (G + j, G + j))
                    for j in range(8): w.e("v_mul_f32 v%d, v%d, v%d" % (G + j, G + j, YA + j))
        if m == 3:
            kv_loads(0)
    stamp(w, 6)
    w.e("v_add_u32 v%d, 0x10000, v%d\nv_add_u32 v%d, 0x10000, v%d" % (vPW, vPW, vPR, vPR))
    part_write(SA, "ps")
    w.wait(vm="xres")
    for j in range(4):
        w.e("v_lshlrev_b32 v%d, 16, v%d\nv_and_b32 v%d, 0xffff0000, v%d" % (OP + 2 * j, XRES + j, OP + 2 * j + 1, XRES + j))
    w.wait_lg_all()
    w.e("s_barrier")
    part_read(YA, "psr")
    w.wait_lg_all()
    part_sum(YA)
    for j in range(8): w.e("v_fma_f32 v%d, v%d, v%d, v%d" % (YA + j, YA + j, G + j, OP + j))
    for j in range(4): w.e("v_cvt_pk_bf16_f32 v%d, v%d, v%d" % (YA + 8 + j, YA + 2 * j, YA + 2 * j + 1))
    w.e("buffer_store_dwordx4 %s, v7, %s, s%d offen" % (vr(YA + 8), srd(SOUT), sXB))
    if Opt.stamps:
        stamp(w, 7)
        l = label("st")
        w.e("s_cmp_lg_u32 s%d, 0\ns_cbranch_scc1 %s\ns_waitcnt lgkmcnt(0)" % (sW, l))
        for j in range(8): w.e("v_mov_b32 v%d, s%d" % (16 + j, sTS + 2 * j))
        w.e("s_lshl_b32 s%d, s2, 5\ns_add_u32 s%d, s%d, %d\nv_mov_b32 v2, 0\ns_mov_b64 exec, 1" % (sTMP, sTMP, sTMP, WS_BYTES))
        w.e("buffer_store_dwordx4 v[16:19], v2, %s, s%d offen\nbuffer_store_dwordx4 v[20:23], v2, %s, s%d offen offset:16" % (srd(SWS), sTMP, srd(SWS), sTMP))
        w.e(l + ":")
    w.e("s_endpgm")
    return w


def prologue():
    w = Stream()
    stamp(w, 0)
    w.e("s_cmp_ge_u32 s2, 256\ns_cbranch_scc1 L_exit")
    for r, off in ((SX, 0), (SWQ, 8), (SW1, 32), (SWS, 80), (SB1, 40), (SW2, 48), (SWO, 16), (SB2, 56), (SOUT, 64), (SDBG, 72)):
        w.e("s_load_dwordx2 s[%d:%d], s[0:1], %d" % (r, r + 1, off))
    w.e("v_lshrrev_b32 v2, 6, v0\nv_and_b32 v%d, 63, v0" % vLANE)
    w.e("v_readfirstlane_b32 s%d, v2" % sW)
    for r, n in ((SX, 2097152), (SWQ, 1572864), (SW1, 1835008), (SWS, WS_BYTES + (8192 if Opt.stamps else 0)), (SB1, 3584), (SW2, 1835008), (SWO, 524288), (SB2, 1024), (SOUT, 2097152), (SDBG, 256)):
        w.e("s_mov_b32 s%d, %d\ns_mov_b32 s%d, 0x20000" % (r + 2, n, r + 3))
    w.e("s_lshr_b32 s3, s2, 3\ns_and_b32 s%d, s3, 7\ns_lshr_b32 s4, s3, 3" % sCB)
    w.e("s_and_b32 s5, s2, 1\ns_lshl_b32 s5, s5, 3\ns_add_u32 s%d, s5, s%d" % (sRB, sCB))
    w.e("s_bfe_u32 s5, s2, 0x20001\ns_lshl_b32 s5, s5, 2\ns_add_u32 s%d, s5, s4" % sG)
    w.e("s_and_b32 s5, s2, 7\ns_lshl_b32 s5, s5, 2\ns_add_u32 s%d, s5, s4" % sTP)
    w.e("s_lshl_b32 s%d, s%d, 10" % (sWL, sW))
    w.e("s_lshl_b32 s%d, s%d, 17" % (sXB, sRB))
    w.e("s_lshr_b32 s3, s%d, 1\ns_lshr_b32 s4, s%d, 2\ns_and_b32 s5, s3, 1\ns_mul_i32 s4, s4, 448" % (sG, sG))
    w.e("s_mul_i32 s6, s5, 192\ns_add_u32 s6, s6, s4\ns_add_u32 s6, s6, 64")
    w.e("s_lshl_b32 s7, s5, 5\ns_add_u32 s7, s7, s4\ns_add_u32 s7, s7, 192")
    w.e("s_mul_i32 s5, s5, 384\ns_add_u32 s5, s5, s4")
    w.e("s_lshl_b32 s4, s3, 7")
    w.e("s_mul_i32 s%d, s%d, %d" % (sT3, sRB, 4 * TOKBLK))
    w.e("s_lshr_b32 s%d, s%d, 2\ns_lshl_b32 s%d, s%d, 11\ns_add_u32 s%d, s%d, s%d" % (sT2, sW, sT2, sT2, sT2, sT2, sT3))
    w.e("s_bitcmp1_b32 s%d, 0\ns_cbranch_scc1 L_setup_kv" % sG)
    w.e("s_lshl_b32 s%d, s6, 1\ns_add_u32 s%d, s%d, 128\ns_lshl_b32 s%d, s7, 1\ns_mov_b32 s%d, s4" % (sCOL[0], sCOL[1], sCOL[0], sCOL[2], sCOL[3]))
    w.e("s_lshl_b32 s%d, s6, 6\ns_add_u32 s%d, s%d, s%d\ns_add_u32 s%d, s%d, 4096" % (sST[0], sST[0], sST[0], sT2, sST[1], sST[0]))
    w.e("s_lshl_b32 s%d, s7, 6\ns_add_u32 s%d, s%d, s%d" % (sST[2], sST[2], sST[2], sT3))
    w.e("s_lshl_b32 s%d, s3, 12\ns_add_u32 s%d, s%d, s%d\ns_add_u32 s%d, s%d, %d" % (sST[3], sST[3], sST[3], sT2, sST[3], sST[3], 112 * 1024))
    w.e("s_branch L_setup_done\nL_setup_kv:")
    w.e("s_add_u32 s%d, s4, 1024\ns_add_u32 s%d, s4, 2048\ns_lshl_b32 s%d, s5, 1\ns_mov_b32 s%d, 0" % (sCOL[0], sCOL[1], sCOL[2], sCOL[3]))
    w.e("s_lshl_b32 s%d, s5, 6\ns_add_u32 s%d, s%d, s%d" % (sST[2], sST[2], sST[2], sT2))
    w.e("s_mov_b32 s%d, 0\ns_mov_b32 s%d, 0\ns_mov_b32 s%d, 0" % (sST[0], sST[1], sST[3]))
    w.e("s_mov_b32 s7, s5\ns_mov_b32 s6, s5")
    w.e("L_setup_done:")
    w.e("s_lshl_b32 s%d, s3, 13\ns_add_u32 s%d, s%d, %d" % (sKVA, sKVA, sKVA, KVO))
    w.e("s_lshl_b32 s%d, s%d, 11\ns_lshl_b32 s4, s%d, 2\ns_add_u32 s%d, s%d, s4\ns_add_u32 s%d, s%d, %d" % (sFLG, sRB, sG, sFLG, sFLG, sFLG, sFLG, KVO + FLAG_OFF))
    w.e("s_lshl_b32 s4, s%d, 1\ns_lshr_b32 s5, s%d, 2\ns_add_u32 s4, s4, s5\ns_mul_i32 s4, s4, %d" % (sTP, sW, TOKBLK))
    w.e("s_and_b32 s5, s%d, 3\ns_mul_i32 s%d, s5, %d\ns_add_u32 s%d, s%d, s4" % (sW, sAB, 28 * 1024, sAB, sAB))
    w.e("s_mov_b32 s%d, 0x3f803f80\ns_mov_b32 s%d, %s\ns_mov_b32 s%d, %s\ns_mov_b32 s%d, %s" % (sONE, sC1, f32(GC1), sL2E, f32(LOG2E), sEPS, f32(1e-6)))
    w.e("s_mov_b32 s%d, 0x0000ffff\ns_mov_b32 s%d, 0x0000ffff" % (sLO, sLO + 1))
    w.e("v_lshrrev_b32 v16, 3, v0\nv_and_b32 v17, 7, v0")
    w.e("v_bfe_u32 v18, v0, 4, 3\nv_xor_b32 v18, v17, v18\nv_lshlrev_b32 v18, 4, v18")
    w.e("v_lshl_add_u32 v%d, v16, 10, v18" % vXD)
    w.e("v_bfe_u32 v18, v0, 4, 1\nv_lshlrev_b32 v18, 2, v18\nv_xor_b32 v18, v17, v18\nv_lshlrev_b32 v18, 4, v18")
    w.e("s_movk_i32 s4, 3072\nv_mad_u32_u24 v%d, v16, s4, v18" % vAD)
    w.e("s_movk_i32 s4, 3584\nv_mad_u32_u24 v%d, v16, s4, v18" % vBD)
    w.e("v_lshl_add_u32 v%d, v16, 10, v18\ns_lshl_b32 s5, s%d, 7\nv_add_u32 v%d, s5, v%d" % (vW2D, sCB, vW2D, vW2D))
    w.e("v_lshrrev_b32 v16, 2, v0\nv_and_b32 v17, 3, v0\nv_lshlrev_b32 v17, 4, v17\nv_mad_u32_u24 v%d, v16, s4, v17" % vHD)
    w.e("v_add_u32 v16, s6, v0\nv_and_b32 v17, 63, v0\nv_add_u32 v17, s7, v17\nv_cmp_gt_u32 vcc, 128, v0\nv_cndmask_b32 v16, v17, v16, vcc\nv_lshlrev_b32 v16, 1, v16")
    w.e("s_waitcnt lgkmcnt(0)")
    w.e("s_cmp_ge_u32 s2, 8\ns_cbranch_scc1 L_noinit")
    w.e("v_mov_b32 v20, 0\nv_mov_b32 v21, 0\nv_mov_b32 v22, 0\nv_mov_b32 v23, 0\nv_lshlrev_b32 v17, 4, v0")
    w.e("s_lshl_b32 s4, s2, 13\ns_add_u32 s4, s4, %d" % KVO)
    w.e("buffer_store_dwordx4 v[20:23], v17, %s, s4 offen sc1" % srd(SWS))
    w.e("L_noinit:")
    w.e("buffer_load_ushort v%d, v16, %s, 0 offen" % (P, srd(SB1)))
    w2 = Stream()
    w.e("s_and_b32 s4, s%d, 3\ns_lshr_b32 s5, s%d, 2" % (sW, sW))
    w.e("v_lshrrev_b32 v16, 5, v%d\nv_lshlrev_b32 v16, 10, v16" % vLANE)
    w.e("v_bfe_u32 v17, v%d, 2, 2\nv_lshl_add_u32 v16, v17, 7, v16" % vLANE)
    w.e("v_bfe_u32 v17, v%d, 3, 1\nv_xor_b32 v17, s5, v17\nv_lshl_add_u32 v16, v17, 6, v16" % vLANE)
    w.e("v_bfe_u32 v17, v%d, 4, 1\nv_lshl_add_u32 v16, v17, 5, v16" % vLANE)
    w.e("v_and_b32 v17, 3, v%d\nv_lshl_add_u32 v16, v17, 3, v16" % vLANE)
    w.e("v_and_b32 v17, 31, v%d\nv_bfe_u32 v18, v%d, 1, 3\nv_lshrrev_b32 v19, 5, v%d\nv_xor_b32 v18, v18, v19" % (vLANE, vLANE, vLANE))
    w.e("v_lshlrev_b32 v17, 7, v17\nv_lshl_add_u32 v17, v18, 4, v17\ns_lshl_b32 s6, s4, 12\nv_add_u32 v17, s6, v17")
    for p in range(4):
        w.e("s_xor_b32 s6, s4, %d\ns_lshl_b32 s7, s6, 11\ns_lshl_b32 s6, s6, 5" % p)
        w.e("v_add_u32 v%d, s7, v16\nv_xor_b32 v%d, s6, v17" % (vW[p], vX[p]))
    w.e("s_mul_i32 s6, s4, %d\nv_lshlrev_b32 v%d, 4, v%d\nv_add_u32 v%d, s6, v%d" % (TOKBLK, vSTO, vLANE, vSTO, vSTO))
    w.e("v_lshlrev_b32 v%d, 4, v19\nv_add_u32 v%d, %d, v%d" % (vMS, vMS, MISC, vMS))
    w.e("v_and_b32 v17, 31, v%d\nv_lshlrev_b32 v17, 2, v17\nv_add_u32 v%d, %d, v17" % (vLANE, vMS2, MISC))
    w.e("v_and_b32 v17, 31, v%d\nv_cmp_eq_u32 vcc, 0, v17\nv_cmp_eq_u32 s[6:7], 20, v17\ns_or_b64 vcc, vcc, s[6:7]" % vLANE)
    w.e("v_mov_b32 v17, s%d\nv_cndmask_b32 v%d, 0, v17, vcc" % (sONE, SEL))
    w.e("v_mov_b32 v%d, v%d\nv_mov_b32 v%d, v%d\nv_mov_b32 v%d, v%d" % (SEL + 1, SEL, SEL + 2, SEL, SEL + 3, SEL))
    w.e("v_lshrrev_b32 v17, 2, v%d\ns_lshr_b32 s6, s%d, 1\nv_cmp_eq_u32 s[%d:%d], s6, v17" % (vLANE, sTP, sMINE, sMINE + 1))
    w.e("v_mov_b32 v%d, 0\nv_mov_b32 v%d, 0" % (vS0, vS1))
    w.e("v_mov_b32 v20, 0\nv_mov_b32 v21, 0\nv_mov_b32 v22, 0\nv_mov_b32 v23, 0")
    w.e("v_lshlrev_b32 v17, 4, v0\nv_add_u32 v17, %d, v17\nds_write_b128 v17, v[20:23] offset:%d" % (MISC, KVR))
    w.e("v_lshlrev_b32 v17, 1, v0\nv_and_b32 v17, 0x3fc, v17\nv_add_u32 v17, %d, v17\nds_write_b32 v17, v20 offset:%d" % (MISC, CS))
    w.e("s_waitcnt lgkmcnt(0)")
    w.e("s_bitcmp1_b32 s%d, 0\ns_cbranch_scc1 L_kv" % sG)
    w.e("v_mov_b32 v%d, %s" % (vC0, f32(GC0)))
    w.e("s_cmp_lg_u32 s5, 0\ns_cbranch_scc1 L_q1\ns_branch L_q0")
    w.e("L_kv:\nv_mov_b32 v%d, s%d\ns_cmp_lg_u32 s5, 0\ns_cbranch_scc1 L_kv1\ns_branch L_kv0" % (vC0, sONE))
    w.e("L_exit:\ns_endpgm")
    return w


HEADER = """; Fused LayerNorm + linear attention + GELU MLP gate, one persistent launch (generated by gen/gen.py).
; @launch grid=(256,1,1) block=(512,1,1) lds=163840
.amdgcn_target "amdgcn-amd-amdhsa--gfx950"
.text
.globl {k}
.p2align 8
.type {k},@function
{k}:
"""
FOOTER = """
.section .rodata,"a"
.p2align 6
.amdhsa_kernel {k}
  .amdhsa_next_free_vgpr 256
  .amdhsa_next_free_sgpr 102
  .amdhsa_accum_offset 256
  .amdhsa_group_segment_fixed_size 0
  .amdhsa_kernarg_size 88
  .amdhsa_user_sgpr_count 2
  .amdhsa_user_sgpr_kernarg_segment_ptr 1
  .amdhsa_system_sgpr_workgroup_id_x 1
  .amdhsa_float_denorm_mode_32 3
.end_amdhsa_kernel
"""


def build():
    out = [HEADER.format(k=KNAME)]
    out += pad_hazards(prologue().lines)
    p2 = phase2().lines
    for name, kv, ch in (("L_q0", False, 0), ("L_q1", False, 1), ("L_kv0", True, 0), ("L_kv1", True, 1)):
        out.append(".p2align 6\n" + name + ":")
        body = phase1(kv, ch).lines
        padded = pad_hazards(body)
        out += padded
    out.append(".p2align 6")
    out += pad_hazards(["s_nop 7", "s_nop 7"] + p2)[2:]
    out.append(FOOTER.format(k=KNAME))
    return "\n".join(("    " + l if not (l.endswith(":") or l.startswith(".") or l.startswith(";") or "\n" in l) else l) for l in out)


if __name__ == "__main__":
    if "--stamps" in sys.argv:
        Opt.stamps = True
    dst = [a for a in sys.argv[1:] if not a.startswith("--")]
    txt = build()
    if dst:
        open(dst[0], "w").write(txt)
    else:
        print(txt)
```

```python
import re


class Stream:
    def __init__(self, vmqs=None):
        self.lines = []
        self.vmq = [list(q) for q in vmqs] if vmqs else [[]]
        self.lg = []

    def e(self, s):
        for ln in s.split("\n"):
            ln = ln.strip()
            if ln:
                self.lines.append(ln)

    def c(self, s):
        self.lines.append("; " + s)

    def mark(self, tag):
        for q in self.vmq:
            q.append(tag)

    def vmem(self, s, tag):
        self.e(s)
        self.mark(tag)

    def lds(self, s, tag):
        self.e(s)
        self.lg.append(tag)

    @staticmethod
    def _last(q, tags):
        idx = -1
        for i, t in enumerate(q):
            if t in tags:
                idx = i
        return idx

    @staticmethod
    def _after(q, i):
        return sum(1 for t in q[i + 1:] if not t.endswith("MARK"))

    def _trim(self, n):
        for k, q in enumerate(self.vmq):
            keep, cnt = len(q), 0
            while keep > 0:
                if not q[keep - 1].endswith("MARK"):
                    if cnt == n:
                        break
                    cnt += 1
                keep -= 1
            self.vmq[k] = q[keep:]

    def pop_mark(self, mark):
        ns = []
        for q in self.vmq:
            if mark in q:
                i = q.index(mark)
                ns.append(self._after(q, i))
                q.pop(i)
        return min(ns) if ns else None

    def wait(self, vm=(), lg=()):
        if isinstance(vm, str):
            vm = (vm,)
        if isinstance(lg, str):
            lg = (lg,)
        parts = []
        ns = [self._after(q, self._last(q, vm)) for q in self.vmq if self._last(q, vm) >= 0]
        if ns:
            n = min(ns)
            assert n <= 63
            parts.append("vmcnt(%d)" % n)
            self._trim(n)
        i = self._last(self.lg, lg)
        if i >= 0:
            n = len(self.lg) - 1 - i
            if n > 15:
                n = 15
                i = len(self.lg) - 1 - n
            parts.append("lgkmcnt(%d)" % n)
            self.lg = self.lg[i + 1:]
        if parts:
            self.e("s_waitcnt " + " ".join(parts))

    def wait_lg_all(self):
        if self.lg:
            self.e("s_waitcnt lgkmcnt(0)")
            self.lg = []


_REG = re.compile(r"\b([vsa])(\d+)\b|\b([vsa])\[(\d+):(\d+)\]")


def regs_of(op):
    out = set()
    for m in _REG.finditer(op):
        if m.group(1):
            out.add((m.group(1), int(m.group(2))))
        else:
            for i in range(int(m.group(4)), int(m.group(5)) + 1):
                out.add((m.group(3), i))
    if re.search(r"\bvcc\b", op):
        out.add(("s", "vcc"))
    if re.search(r"\bm0\b", op):
        out.add(("s", "m0"))
    if re.search(r"\bexec\b", op):
        out.add(("s", "exec"))
    return out


TRANS = ("v_exp_f32", "v_log_f32", "v_rcp_f32", "v_rsq_f32", "v_sqrt_f32")


def split_ops(rest):
    ops, depth, cur = [], 0, ""
    for ch in rest:
        if ch == "[":
            depth += 1
        if ch == "]":
            depth -= 1
        if ch == "," and depth == 0:
            ops.append(cur.strip())
            cur = ""
        else:
            cur += ch
    if cur.strip():
        ops.append(cur.strip())
    return ops


class Ins:
    def __init__(self, line):
        self.line = line
        p = line.split(None, 1)
        self.op = p[0]
        ops = split_ops(p[1]) if len(p) > 1 else []
        op = self.op
        self.kind = "other"
        self.dst, self.src = set(), set()
        self.srcC = set()
        self.passes = 0
        self.states = 1
        if op == "s_nop":
            self.states = int(ops[0], 0) + 1
        elif op.startswith("v_mfma"):
            self.kind = "mfma"
            self.passes = 8 if "32x32" in op else 4
            self.dst = regs_of(ops[0])
            self.src = regs_of(ops[1]) | regs_of(ops[2])
            self.srcC = regs_of(ops[3])
        elif op.startswith("v_"):
            self.kind = "valu"
            self.dst = regs_of(ops[0])
            for o in ops[1:]:
                self.src |= regs_of(o)
            if op.startswith("v_dot2c") or op.startswith("v_fmac") or op.startswith("v_permlane"):
                self.src |= self.dst
            if op.startswith("v_permlane"):
                self.dst |= regs_of(ops[1])
            if op.startswith("v_cndmask") and len(ops) == 3:
                self.src.add(("s", "vcc"))
        elif op.startswith("buffer_") or op.startswith("global_"):
            self.kind = "vmem"
            is_store = "store" in op or "atomic" in op
            lds = re.search(r"\blds\b", line) is not None
            if is_store or lds:
                for o in ops:
                    self.src |= regs_of(o)
                if lds:
                    self.src.add(("s", "m0"))
                self.wide_store = is_store and ("x4" in op or "x3" in op)
                self.store_data = regs_of(ops[0]) if (is_store and op.startswith("buffer_")) else set()
            else:
                self.dst = regs_of(ops[0])
                for o in ops[1:]:
                    self.src |= regs_of(o)
        elif op.startswith("ds_"):
            self.kind = "ds"
            if op.startswith("ds_read"):
                self.dst = regs_of(ops[0])
                for o in ops[1:]:
                    self.src |= regs_of(o)
            else:
                for o in ops:
                    self.src |= regs_of(o)
        elif op.startswith("s_"):
            self.kind = "salu"
            if op.startswith("s_cmp") or op.startswith("s_cbranch") or op in ("s_waitcnt", "s_barrier", "s_branch", "s_sleep", "s_setprio", "s_endpgm") or op.startswith("s_bitcmp"):
                for o in ops:
                    self.src |= regs_of(o)
            else:
                if ops:
                    self.dst = regs_of(ops[0])
                for o in ops[1:]:
                    self.src |= regs_of(o)

    @property
    def is_trans(self):
        return any(self.op.startswith(t) for t in TRANS)

    @property
    def is_dot(self):
        return self.op.startswith("v_dot")


def need(prod, cons):
    n = 0
    vd = {r for r in prod.dst if r[0] in "va"}
    sd = {r for r in prod.dst if r[0] == "s"}
    if prod.kind == "mfma":
        p8 = prod.passes == 8
        touch = cons.src | cons.dst | cons.srcC
        if cons.kind == "mfma":
            if vd & cons.src:
                n = max(n, 12 if p8 else 8)
            if vd & cons.srcC:
                if not (vd == cons.srcC and prod.passes == cons.passes):
                    n = max(n, 10 if p8 else 6)
            elif vd & cons.dst:
                n = max(n, 12 if p8 else 8)
        elif cons.kind in ("valu", "vmem", "ds"):
            if vd & touch:
                n = max(n, 12 if p8 else 8)
        if cons.kind in ("valu", "ds", "vmem") and (prod.srcC & cons.dst):
            n = max(n, 7 if p8 else 3)
    if prod.kind == "valu":
        if cons.kind == "mfma" and vd & (cons.src | cons.srcC):
            n = max(n, 3 if prod.is_dot else 2)
        if prod.is_trans and cons.kind in ("valu", "vmem", "ds", "mfma") and vd & cons.src:
            n = max(n, 1)
        if prod.is_dot and cons.kind != "salu" and (vd & (cons.src | cons.dst)):
            if not (cons.op == prod.op and not (vd & (cons.src - cons.dst))):
                n = max(n, 3)
        if cons.op.startswith("v_permlane") and vd & cons.src:
            n = max(n, 2)
        if (cons.op.startswith("v_readfirstlane") or cons.op.startswith("v_readlane")) and vd & cons.src:
            n = max(n, 1)
        if sd:
            if cons.kind == "vmem" and sd & cons.src:
                n = max(n, 5)
            if cons.kind in ("valu", "mfma") and sd & cons.src:
                n = max(n, 2)
            if cons.kind == "salu" and sd & cons.src:
                n = max(n, 2)
    if prod.kind == "salu":
        if ("s", "m0") in sd and cons.kind == "vmem" and ("s", "m0") in cons.src:
            n = max(n, 1)
    if prod.kind == "vmem" and getattr(prod, "wide_store", False):
        if cons.kind in ("valu", "mfma", "ds", "vmem") and prod.store_data & cons.dst:
            n = max(n, 2)
    return n


def pad_hazards(lines):
    out = []
    hist = []
    pos = 0
    for ln in lines:
        if ln.startswith(";") or ln.endswith(":") or ln.startswith("."):
            out.append(ln)
            continue
        ins = Ins(ln)
        req = 0
        for p, ppos in hist:
            k = need(p, ins)
            if k:
                have = pos - ppos
                req = max(req, k - have)
        while req > 0:
            k = min(req, 16)
            out.append("s_nop %d" % (k - 1))
            pos += k
            req -= k
        out.append(ln)
        pos += ins.states
        hist.append((ins, pos))
        hist = [(p, pp) for p, pp in hist if pos - pp < 13]
    return out
```

```python
import sys, struct, math
from asmlib import Stream, pad_hazards

KNAME = "recurrent_scan__linear_attn_block__dense_activation_gelu__prompt_kernel"


def f32(x):
    return "0x%08x" % struct.unpack("<I", struct.pack("<f", x))[0]


LOG2E = 1.4426950408889634
GC0 = -2.0 * LOG2E * math.sqrt(2.0 / math.pi)
GC1 = GC0 * 0.044715

TOKBLK = 144 * 1024
KVO = 0xA00000
WS_BYTES = KVO + 0x10000
FLAG_OFF = 1152

UNIT = 8192
MISC = 18 * UNIT
ST, RST, NMR, CS2, BIAS, CSP = 0, 2048, 2560, 3072, 4096, 8192
PY, PS = 32768, 98304

SX, SWQ, SW1, SW2, SWO, SWS, SOUT, SDBG, SB1, SB2 = 8, 12, 16, 20, 24, 28, 32, 36, 40, 44
sW, sWL, sRB, sG, sXB = 48, 49, 50, 51, 52
sCOL = [53, 54, 55, 56]
sST = [57, 58, 59, 60]
sTMP, sONE, sC1, sL2E, sEPS = 61, 62, 63, 64, 65
sTP, sCB, sFLG, sSPIN = 66, 67, 68, 69
sM0, sMINE = 70, 72
sAB, sKVA, sT2, sT3 = 74, 75, 76, 77
sLO = 78
sM1 = 80
sTS = 84


def srd(r):
    return "s[%d:%d]" % (r, r + 3)


def vr(a, n=4):
    return "v[%d:%d]" % (a, a + n - 1)


vLANE, vXD, vAD, vBD, vHD, vW2D, vSTO = 1, 2, 3, 4, 5, 6, 7
vW = [8, 9, 10, 11]
vX = [12, 13, 14, 15]
WF = 16
ACC = {"A": 32, "B": 48, "C": 64}
CSA, SEL = 80, 84
CB = [(88, 92), (96, 100)]
OUTR = [104, 108]
T, P = 112, 116
vR, vN, vC0, vMS, vS0, vS1, vMS2, vTMP = 120, 121, 122, 123, 124, 125, 126, 127
vCSW = 2
XR = 128
AR = 128
vA = 3
vPOLL = 192
vPA = vPOLL + 4

PF = 2
POLLW, PUBW = 0, 1
C_FMA, C_TR, C_VM = 1.5, 2.0, 3.0


class Opt:
    stamps = False
    cyc = False
    p1stamps = None
    p2stamps = False


class Fill:
    def __init__(self):
        self.q = []
        self.credit = 0.0

    def add(self, fn, cost=1.0):
        self.q.append((fn, cost))

    def ins(self, w, s, cost=None):
        if cost is None:
            op = s.split()[0]
            cost = C_FMA if op.startswith("v_fma") else C_TR if op in ("v_exp_f32", "v_rcp_f32", "v_rsq_f32") else 0.0 if op.startswith("s_") else 1.0
        self.add(lambda: w.e(s), cost)

    def total(self):
        return sum(c for _, c in self.q)

    def pull(self, budget):
        self.credit = min(self.credit, 0.0) + budget
        while self.q and (self.credit > 0.25 or self.q[0][1] == 0):
            fn, cost = self.q.pop(0)
            fn()
            self.credit -= cost

    def drain(self):
        self.pull(1e9)
        self.credit = 0.0


def dma(w, srd_r, voff, sbase, imm, unit, tag):
    w.e("s_add_u32 m0, s%d, %d" % (sWL, unit * UNIT))
    if sbase is None:
        w.e("s_mov_b32 s%d, %d" % (sTMP, imm))
    else:
        w.e("s_add_u32 s%d, s%d, %d" % (sTMP, sbase, imm))
    w.vmem("buffer_load_dwordx4 v%d, %s, s%d offen lds" % (voff, srd(srd_r), sTMP), tag)


P2_U = [1, 4, 0, 6, 2, 5, 3]


def w2_dma(w, m, kq):
    unit = 4 * (m % 4) + kq
    if m < 7:
        dma(w, SW2, vW2D, None, (448 * kq + 64 * P2_U[m]) * 1024, unit, "W2_%d" % m)
    else:
        dma(w, SWO, vW2D, None, (128 * kq + 64 * (m - 7)) * 1024, unit, "W2_%d" % m)


sPQ = 82


def a_load(w, m, s):
    r = AR + 16 * (m % 4) + 4 * s
    if m < 7:
        w.e("s_add_u32 s%d, s%d, %d" % (sTMP, sAB, 4096 * P2_U[m]))
    else:
        w.e("s_add_u32 s%d, s%d, %d" % (sTMP, sPQ, 4096 * (m - 7)))
    w.vmem("buffer_load_dwordx4 %s, v%d, %s, s%d offen offset:%d sc1" % (vr(r), vA, srd(SWS), sTMP, 1024 * s), "A%d_%d" % (m, s))


def stamp(w, i, force=False):
    if (Opt.p1stamps or Opt.p2stamps) and i >= (2 if Opt.p1stamps else 1) and not force:
        return
    if Opt.stamps:
        w.e("%s s[%d:%d]" % ("s_memtime" if Opt.cyc else "s_memrealtime", sTS + 2 * i, sTS + 2 * i + 1))


_lbl = [0]


def label(p):
    _lbl[0] += 1
    return "L_%s_%d" % (p, _lbl[0])


def poll_issue(w, vPOLL=vPOLL, vPA=vPA):
    l = label("pi")
    w.e("s_cmp_lg_u32 s%d, %d\ns_cbranch_scc1 %s" % (sW, POLLW, l))
    w.e("buffer_load_dwordx4 %s, v%d, %s, 0 offen sc1" % (vr(vPOLL), vPA, srd(SWS)))
    w.e(l + ":")
    w.mark("POLLMARK")


def poll_check(w, tq, tk_mine, tk_all, data=vPOLL, vPA=vPA):
    n = w.pop_mark("POLLMARK")
    l, lp = label("pc"), label("pl")
    w.e("s_cmp_lg_u32 s%d, %d\ns_cbranch_scc1 %s" % (sW, POLLW, l))
    w.e("s_mov_b32 s%d, 0" % sSPIN)
    if n is not None:
        w.e("s_waitcnt vmcnt(%d)" % n)
    w.e(lp + ":")
    w.e("v_min_u32 v%d, v%d, v%d" % (data, data, data + 2))
    w.e("v_min_u32 v%d, v%d, v%d" % (data + 1, data + 1, data + 3))
    w.e("v_cmp_le_u32 s[%d:%d], %d, v%d" % (sM0, sM0 + 1, tq, data))
    w.e("v_cmp_le_u32 s[%d:%d], %d, v%d" % (sM1, sM1 + 1, max(tk_mine, tk_all), data + 1))
    if tk_all:
        w.e("s_orn2_b64 s[%d:%d], s[%d:%d], s[%d:%d]" % (sM0, sM0 + 1, sM0, sM0 + 1, sMINE, sMINE + 1))
        w.e("s_and_b64 s[%d:%d], s[%d:%d], s[%d:%d]" % (sM0, sM0 + 1, sM0, sM0 + 1, sM1, sM1 + 1))
    else:
        w.e("s_and_b64 s[%d:%d], s[%d:%d], s[%d:%d]" % (sM0, sM0 + 1, sM0, sM0 + 1, sM1, sM1 + 1))
        w.e("s_orn2_b64 s[%d:%d], s[%d:%d], s[%d:%d]" % (sM0, sM0 + 1, sM0, sM0 + 1, sMINE, sMINE + 1))
    w.e("s_cmp_eq_u64 s[%d:%d], -1\ns_cbranch_scc1 %s" % (sM0, sM0 + 1, l))
    w.e("s_add_u32 s%d, s%d, 1\ns_cmp_ge_u32 s%d, 0x40000\ns_cbranch_scc1 %s" % (sSPIN, sSPIN, sSPIN, l))
    w.e("buffer_load_dwordx4 %s, v%d, %s, 0 offen sc1" % (vr(data), vPA, srd(SWS)))
    w.e("s_waitcnt vmcnt(0)\ns_branch %s" % lp)
    w.e(l + ":")


def publish(w, val, vtmp):
    l = label("pub")
    w.e("s_cmp_lg_u32 s%d, %d\ns_cbranch_scc1 %s" % (sW, PUBW, l))
    w.e("v_mov_b32 v%d, %d" % (vtmp, val))
    w.e("s_mov_b64 exec, 1")
    w.e("buffer_store_dword v%d, off, %s, s%d sc1" % (vtmp, srd(SWS), sFLG))
    w.e("s_mov_b64 exec, -1")
    w.e(l + ":")


def epi_group_reads(w, F, kind, tile, i, st):
    c, b = CB[st]
    if kind in ("gelu", "phi"):
        F.add(lambda: w.lds("ds_read_b128 %s, v%d offset:%d" % (vr(c), vMS, CS2 + tile * 128 + 32 * i), "g%d" % st), 0.0)
        if kind == "gelu":
            F.add(lambda: w.lds("ds_read_b128 %s, v%d offset:%d" % (vr(b), vMS, BIAS + tile * 128 + 32 * i), "g%d" % st), 0.0)
    else:
        F.add(lambda: w.lds("ds_read_b128 %s, v%d offset:%d" % (vr(c), vTMP, RST + 32 * i), "g%d" % st), 0.0)
        F.add(lambda: w.lds("ds_read_b128 %s, v%d offset:%d" % (vr(b), vTMP, NMR + 32 * i), "g%d" % st), 0.0)


def epi_group(w, F, kind, a, st, o, cs=None):
    c, b = CB[st]
    F.add(lambda: w.wait(lg="g%d" % st), 0.01)
    R = range(4)
    if kind == "gelu":
        for j in R: F.ins(w, "v_fma_f32 v%d, v%d, v%d, v%d" % (b + j, vN, c + j, b + j))
        for j in R: F.ins(w, "v_fma_f32 v%d, v%d, v%d, v%d" % (T + j, a + j, vR, b + j))
        for j in R: F.ins(w, "v_mul_f32 v%d, v%d, v%d" % (P + j, T + j, T + j))
        for j in R: F.ins(w, "v_fma_f32 v%d, v%d, s%d, v%d" % (P + j, P + j, sC1, vC0))
        for j in R: F.ins(w, "v_mul_f32 v%d, v%d, v%d" % (P + j, T + j, P + j))
        for j in R: F.ins(w, "v_exp_f32 v%d, v%d" % (P + j, P + j))
        for j in R: F.ins(w, "v_add_f32 v%d, 1.0, v%d" % (P + j, P + j))
        for j in R: F.ins(w, "v_rcp_f32 v%d, v%d" % (P + j, P + j))
        for j in R: F.ins(w, "v_mul_f32 v%d, v%d, v%d" % (T + j, T + j, P + j))
    elif kind in ("phi", "k"):
        if kind == "phi":
            for j in R: F.ins(w, "v_fma_f32 v%d, v%d, v%d, s%d" % (b + j, vN, c + j, sEPS))
            for j in R: F.ins(w, "v_fma_f32 v%d, v%d, v%d, v%d" % (T + j, a + j, vR, b + j))
        else:
            for j in R: F.ins(w, "v_fma_f32 v%d, v%d, v%d, s%d" % (b + j, b + j, cs, sEPS))
            for j in R: F.ins(w, "v_fma_f32 v%d, v%d, v%d, v%d" % (T + j, a + j, c + j, b + j))
        for j in R: F.ins(w, "v_mul_f32 v%d, s%d, v%d" % (P + j, sL2E, T + j))
        for j in R: F.ins(w, "v_min_f32 v%d, 0, v%d" % (P + j, P + j))
        for j in R: F.ins(w, "v_exp_f32 v%d, v%d" % (P + j, P + j))
        for j in R: F.ins(w, "v_max_f32 v%d, s%d, v%d" % (T + j, sEPS, T + j))
        for j in R: F.ins(w, "v_add_f32 v%d, v%d, v%d" % (T + j, T + j, P + j))
    elif kind == "v":
        for j in R: F.ins(w, "v_mul_f32 v%d, v%d, v%d" % (b + j, b + j, cs))
        for j in R: F.ins(w, "v_fma_f32 v%d, v%d, v%d, v%d" % (T + j, a + j, c + j, b + j))
    F.ins(w, "v_cvt_pk_bf16_f32 v%d, v%d, v%d" % (o, T, T + 1))
    F.ins(w, "v_cvt_pk_bf16_f32 v%d, v%d, v%d" % (o + 1, T + 2, T + 3))


def cs_sum(w, F, tiles, dst, write):
    a, b = CB[0]
    o = CSP // 256
    for n, t in enumerate(tiles):
        r = b if n else a
        F.add(lambda r=r, t=t: w.lds("ds_read2st64_b32 %s, v%d offset0:%d offset1:%d" % (vr(r, 2), vMS2, o + t, o + 8 + t), "cs"), 0.0)
        F.add(lambda r=r, t=t: w.lds("ds_read2st64_b32 %s, v%d offset0:%d offset1:%d" % (vr(r + 2, 2), vMS2, o + 16 + t, o + 24 + t), "cs"), 0.0)
    F.add(lambda: None, 6.0)
    F.add(lambda: w.wait(lg="cs"), 0.01)
    if len(tiles) > 1:
        for j in range(4): F.ins(w, "v_add_f32 v%d, v%d, v%d" % (a + j, a + j, b + j))
    F.ins(w, "v_add_f32 v%d, v%d, v%d" % (a, a, a + 1))
    F.ins(w, "v_add_f32 v%d, v%d, v%d" % (a + 2, a + 2, a + 3))
    F.ins(w, "v_add_f32 v%d, v%d, v%d" % (dst, a, a + 2))
    if write:
        F.add(lambda: w.lds("ds_write_b32 v%d, v%d offset:%d" % (vMS2, dst, CS2 + tiles[0] * 128), "csw2"), 0.0)


def epi_swapped(w, F, kind, acc, tile, groups, sst, tag, cs_tiles=None):
    cs_sum(w, F, cs_tiles or [tile], CB[0][0], True)
    epi_group_reads(w, F, kind, tile, groups[0], 0)
    for n, i in enumerate(groups):
        if n + 1 < len(groups):
            epi_group_reads(w, F, kind, tile, groups[n + 1], (n + 1) & 1)
        if n == 0:
            F.add(lambda: None, 4.0)
        ob = OUTR[(i >> 1) & 1]
        epi_group(w, F, kind, acc + 4 * i, n & 1, ob + 2 * (i & 1))
        if i & 1:
            F.add(lambda ob=ob, i=i: w.vmem("buffer_store_dwordx4 %s, v%d, %s, s%d offen offset:%d sc1"
                                             % (vr(ob), vSTO, srd(SWS), sst, 1024 * (i >> 1)), tag), C_VM)


def stats_finish(w, F, kv):
    a, b = CB[1]
    F.add(lambda: w.lds("ds_read2_b32 %s, v%d offset0:0 offset1:32" % (vr(a, 2), vS0), "st"), 0.0)
    F.add(lambda: w.lds("ds_read2_b32 %s, v%d offset0:0 offset1:32" % (vr(b, 2), vS1), "st"), 0.0)
    F.add(lambda: None, 6.0)
    F.add(lambda: w.wait(lg="st"), 0.01)
    F.ins(w, "v_add_f32 v%d, v%d, v%d" % (a, a, a + 1))
    F.ins(w, "v_add_f32 v%d, v%d, v%d" % (b, b, b + 1))
    F.ins(w, "v_mul_f32 v%d, %s, v%d" % (a, f32(1.0 / 512), a))
    F.ins(w, "v_mul_f32 v%d, %s, v%d" % (b, f32(1.0 / 512), b))
    F.ins(w, "v_fma_f32 v%d, -v%d, v%d, v%d" % (b, a, a, b))
    F.ins(w, "v_max_f32 v%d, 0, v%d" % (b, b))
    F.ins(w, "v_add_f32 v%d, %s, v%d" % (b, f32(1e-5), b))
    F.ins(w, "v_rsq_f32 v%d, v%d" % (vR, b))
    F.ins(w, "v_mul_f32 v%d, -v%d, v%d" % (vN, a, vR))
    if kv:
        F.ins(w, "s_and_b32 s%d, s%d, 3" % (sT2, sW))
        F.ins(w, "s_lshl_b32 s%d, s%d, 7" % (sT2, sT2))
        F.ins(w, "v_add_u32 v%d, s%d, v%d" % (a, sT2, vMS2))
        F.ins(w, "v_add_u32 v%d, s%d, v%d" % (vTMP, sT2, vMS))
        F.add(lambda: w.lds("ds_write_b32 v%d, v%d offset:%d" % (a, vR, RST), "rs"), 0.0)
        F.add(lambda: w.lds("ds_write_b32 v%d, v%d offset:%d" % (a, vN, NMR), "rs"), 0.0)


def late_setup(w, F):
    L = []
    L += ["s_and_b32 s4, s%d, 3" % sW, "s_lshr_b32 s5, s%d, 2" % sW]
    L += ["v_and_b32 v17, 31, v%d" % vLANE, "v_bfe_u32 v18, v%d, 1, 3" % vLANE, "v_lshrrev_b32 v19, 5, v%d" % vLANE, "v_xor_b32 v18, v18, v19",
          "v_lshlrev_b32 v17, 7, v17", "v_lshl_add_u32 v17, v18, 4, v17", "s_lshl_b32 s6, s4, 12", "v_add_u32 v17, s6, v17"]
    L += ["v_lshlrev_b32 v16, 10, v19", "v_bfe_u32 v18, v%d, 2, 2" % vLANE, "v_lshl_add_u32 v16, v18, 7, v16",
          "v_bfe_u32 v18, v%d, 3, 1" % vLANE, "v_xor_b32 v18, s5, v18", "v_lshl_add_u32 v16, v18, 6, v16",
          "v_bfe_u32 v18, v%d, 4, 1" % vLANE, "v_lshl_add_u32 v16, v18, 5, v16",
          "v_and_b32 v18, 3, v%d" % vLANE, "v_lshl_add_u32 v16, v18, 3, v16"]
    for p in range(4):
        L += ["s_xor_b32 s6, s4, %d" % p, "s_lshl_b32 s7, s6, 11", "s_lshl_b32 s6, s6, 5",
              "v_add_u32 v%d, s7, v16" % vW[p], "v_xor_b32 v%d, s6, v17" % vX[p]]
    L += ["s_mov_b32 s%d, 0x3f803f80" % sONE, "s_mov_b32 s%d, %s" % (sC1, f32(GC1)), "s_mov_b32 s%d, %s" % (sL2E, f32(LOG2E)), "s_mov_b32 s%d, %s" % (sEPS, f32(1e-6)),
          "s_mov_b32 s%d, 0x0000ffff" % sLO, "s_mov_b32 s%d, 0x0000ffff" % (sLO + 1)]
    L += ["v_and_b32 v17, 31, v%d" % vLANE, "v_cmp_eq_u32 vcc, 0, v17", "v_cmp_eq_u32 s[6:7], 20, v17", "v_mov_b32 v18, s%d" % sONE, "s_or_b64 vcc, vcc, s[6:7]",
          "v_cndmask_b32 v%d, 0, v18, vcc" % SEL, "v_cndmask_b32 v%d, 0, v18, vcc" % (SEL + 1), "v_cndmask_b32 v%d, 0, v18, vcc" % (SEL + 2), "v_cndmask_b32 v%d, 0, v18, vcc" % (SEL + 3)]
    L += ["v_mov_b32 v%d, 0" % vS0, "v_mov_b32 v%d, 0" % vS1]
    L += ["v_lshlrev_b32 v17, 2, v17", "v_add_u32 v%d, %d, v17" % (vMS2, MISC),
          "v_lshlrev_b32 v%d, 4, v19" % vMS, "v_add_u32 v%d, %d, v%d" % (vMS, MISC, vMS),
          "s_mul_i32 s6, s4, %d" % TOKBLK, "v_lshlrev_b32 v%d, 4, v%d" % (vSTO, vLANE), "v_add_u32 v%d, s6, v%d" % (vSTO, vSTO),
          "v_mov_b32 v%d, %s" % (vC0, f32(GC0))]
    L += ["v_lshrrev_b32 v17, 2, v%d" % vLANE, "s_lshr_b32 s6, s%d, 1" % sTP, "v_cmp_eq_u32 s[%d:%d], s6, v17" % (sMINE, sMINE + 1)]
    L += ["s_lshr_b32 s3, s%d, 1" % sG, "s_lshl_b32 s%d, s3, 13" % sKVA, "s_add_u32 s%d, s%d, %d" % (sKVA, sKVA, KVO),
          "s_lshl_b32 s%d, s%d, 11" % (sFLG, sRB), "s_lshl_b32 s6, s%d, 2" % sG, "s_add_u32 s%d, s%d, s6" % (sFLG, sFLG), "s_add_u32 s%d, s%d, %d" % (sFLG, sFLG, KVO + FLAG_OFF),
          "s_lshl_b32 s6, s%d, 1" % sTP, "s_add_u32 s6, s6, s5", "s_mul_i32 s6, s6, %d" % TOKBLK,
          "s_mul_i32 s%d, s4, %d" % (sAB, 28 * 1024), "s_add_u32 s%d, s%d, s6" % (sAB, sAB),
          "s_lshl_b32 s%d, s4, 13" % sPQ, "s_add_u32 s%d, s%d, s6" % (sPQ, sPQ), "s_add_u32 s%d, s%d, %d" % (sPQ, sPQ, 112 * 1024)]
    for s in L:
        F.add(lambda s=s: w.e(s), 1.0)


def phase1(kv, ch):
    w = Stream()
    F = Fill()
    w.c("==== phase 1, %s, column half %d" % ("kv workgroup" if kv else "q workgroup", ch))
    req = []
    pitch = {SWQ: 3072, SW1: 3584}

    def wreq(name, srd_r, voff, col, row0, need, rel):
        req.append([name, lambda u: dma(w, srd_r, voff, col, row0 * pitch[srd_r], u, name), need, rel])

    for c in range(8):
        if not kv:
            wreq("W0_%d" % c, SW1, vBD, sCOL[0], 64 * c, c, c + 2)
        for hx in range(2):
            req.append(["X%d_%d" % (c, hx), lambda u, c=c, hx=hx: dma(w, SX, vXD, sXB, hx * 65536 + c * 128, u, "X%d_%d" % (c, hx)), c, c + 1])
        if kv:
            wreq("W0_%d" % c, SW1, vBD, sCOL[0], 64 * c, c, c + 2)
    if kv:
        passes = [("A", True, 4), ("B", False, 0), ("A", False, 2)]
        for c in range(8): wreq("W1_%d" % c, SWQ, vAD, sCOL[1], 64 * c, 8 + c // 2, 8 + c // 2 + 2)
        for c in range(8): wreq("W2p_%d" % c, SWQ, vAD, sCOL[2], 64 * c, 12 + c // 2, 12 + c // 2 + 2)
        req.append(["XCH0", None, 16, 99])
        req.append(["XCH1", None, 16, 99])
        nb = 16
    else:
        passes = [("A", True, 0), ("B", True, 2), ("C", True, 4), ("A", True, 6)]
        for c in range(8): wreq("W1_%d" % c, SW1, vBD, sCOL[1], 64 * c, 8 + c // 2, 8 + c // 2 + 2)
        for c in range(2):
            for h in range(2):
                nm = "HC%d_%d" % (c, h)
                req.append([nm, lambda u, c=c, h=h, nm=nm: dma(w, SW1, vHD, sCOL[2], (256 * h + 128 * c) * 3584, u, nm), 12 + c, 12 + c + 2])
        req.append(["XCH0", None, 14, 16])
        req.append(["XCH1", None, 14, 16])
        for c in range(8): wreq("W3_%d" % c, SWQ, vAD, sCOL[3], 64 * c, 14 + c // 2, 14 + c // 2 + 2)
        nb = 18
    n1 = len(req)
    start = (-n1) % 18
    for m in range(4):
        for kq in range(4):
            req.append(["W2_%d" % m, lambda u, m=m, kq=kq: w2_dma(w, m, kq), 99, 999])
    unit_of = {}
    issue_at = {}
    for n, r in enumerate(req):
        u = (start + n) % 18
        if n < n1:
            unit_of[r[0]] = u
        else:
            assert u == n - n1
        at_ = -1 if n < 18 else req[n - 18][3]
        assert at_ < r[2] or (r[1] is None and at_ <= r[2]), (r[0], at_, r[2])
        issue_at.setdefault(at_, []).append((r, u))
    for c in range(8):
        assert unit_of["X%d_1" % c] == unit_of["X%d_0" % c] + 1
    assert unit_of["XCH1"] == unit_of["XCH0"] + 1
    xch = unit_of["XCH0"] * UNIT

    VQ = []

    def release(b):
        rs = [(r, u) for r, u in issue_at.pop(b, []) if r[1] is not None]
        rs.sort(key=lambda x: x[0][2])
        for r, u in rs:
            VQ.append(lambda r=r, u=u: r[1](u))

    steps = []
    for pi, (acc, swapped, tile0) in enumerate(passes):
        hc = (not kv) and pi == 2
        n = 16 if hc else 32
        for s in range(n):
            d = dict(pi=pi, s=s, n=n, acc=ACC[acc], swapped=swapped, tile=tile0 + (0 if hc else ch), hc=hc)
            if pi == 0:
                d["bar"] = s // 4
                d["first"] = s % 4 == 0
                d["units"] = ["W0_%d" % (s // 4), "X%d_0" % (s // 4), "X%d_1" % (s // 4)]
                d["off"] = unit_of["W0_%d" % (s // 4)] * UNIT
            elif hc:
                d["bar"] = 12 + s // 8
                d["first"] = s % 8 == 0
                d["units"] = ["HC%d_0" % (s // 8), "HC%d_1" % (s // 8)]
                d["off"] = unit_of["HC%d_%d" % (s // 8, ch)] * UNIT + ((s % 8) // 4) * 4096
            else:
                nm = {1: "W1_%d", 2: "W2p_%d", 3: "W3_%d"}[pi]
                b0 = {1: 8, 2: 12, 3: 14}[pi]
                d["bar"] = b0 + s // 8
                d["first"] = s % 8 == 0
                d["units"] = [nm % (2 * (s // 8)), nm % (2 * (s // 8) + 1)]
                d["off"] = unit_of[nm % (s // 4)] * UNIT
            d["x"] = XR + 4 * (s + (16 * ch if hc else 0))
            steps.append(d)
    NS = len(steps)

    win = {"W": 0, "X": 0}

    def set_window(grp, regs, off):
        want = off // 57344 * 57344
        if want != win[grp]:
            for r in regs:
                w.e("v_add_u32 v%d, %d, v%d" % (r, want - win[grp], r) if want > win[grp]
                    else "v_subrev_u32 v%d, %d, v%d" % (r, win[grp] - want, r))
            win[grp] = want
        return off - want

    hooks_pre = {}
    hooks_post = {}
    pre_tags = {}

    def barrier(b, units):
        for fn in hooks_pre.get(b, []): fn()
        for u in units:
            assert any(u in q for q in w.vmq) or u in done_units or True
        w.wait(vm=tuple(units) + tuple(pre_tags.get(b, ())), lg=("xr", "csadd", "stw", "xchw", "xchr", "kvadd"))
        w.e("s_barrier")
        for fn in hooks_post.get(b, []): fn()
        release(b)

    done_units = set()
    issued = set()

    def reads(i):
        d = steps[i]
        if d["first"]:
            while any(u not in issued_names() for u in d["units"]):
                VQ.pop(0)()
            barrier(d["bar"], d["units"])
            if d["pi"] == 0:
                c = d["s"] // 4
                o = set_window("X", vX, unit_of["X%d_0" % c] * UNIT)
                for p in range(4):
                    w.lds("ds_read_b128 %s, v%d offset:%d" % (vr(XR + 4 * (4 * c + p)), vX[p], o), "xr")
        p = d["s"] % 4
        fr = WF + 4 * (i % 4)
        if d["hc"]:
            o = set_window("X", vX, d["off"])
            w.lds("ds_read_b64_tr_b16 %s, v%d offset:%d" % (vr(fr, 2), vX[p], o), "f%d" % i)
            w.lds("ds_read_b64_tr_b16 %s, v%d offset:%d" % (vr(fr + 2, 2), vX[p], o + 256), "f%d" % i)
        else:
            o = set_window("W", vW, d["off"])
            w.lds("ds_read_b64_tr_b16 %s, v%d offset:%d" % (vr(fr, 2), vW[p], o), "f%d" % i)
            w.lds("ds_read_b64_tr_b16 %s, v%d offset:%d" % (vr(fr + 2, 2), vW[p], o + 512), "f%d" % i)

    seen = set()
    _mark = w.mark

    def mark2(tag):
        seen.add(tag)
        _mark(tag)
    w.mark = mark2

    def issued_names():
        return seen

    def init_signal():
        l = label("ini")
        w.e("s_cmp_lg_u32 s%d, %d\ns_cbranch_scc1 %s\ns_cmp_ge_u32 s2, 8\ns_cbranch_scc1 %s" % (sW, PUBW, l, l))
        w.e("v_mov_b32 v%d, 1\ns_mov_b64 exec, 1" % T)
        w.e("buffer_atomic_add v%d, off, %s, 0" % (T, srd(SDBG)))
        w.e("s_mov_b64 exec, -1\n%s:" % l)

    def bias_to_lds():
        w.wait(vm="bias")
        w.e("v_lshlrev_b32 v%d, 16, v%d" % (P, P))
        w.e("v_lshlrev_b32 v%d, 2, v0\nv_add_u32 v%d, %d, v%d" % (P + 1, P + 1, MISC + BIAS, P + 1))
        w.lds("ds_write_b32 v%d, v%d" % (P + 1, P), "stw")

    def init_poll_issue():
        l = label("ip")
        w.e("s_cmp_lg_u32 s%d, %d\ns_cbranch_scc1 %s" % (sW, POLLW, l))
        w.e("buffer_load_dword v%d, off, %s, 0 sc1" % (P + 2, srd(SDBG)))
        w.e(l + ":")
        w.mark("IPMARK")

    def init_poll_check():
        n = w.pop_mark("IPMARK")
        l, lp = label("ic"), label("il")
        w.e("s_cmp_lg_u32 s%d, %d\ns_cbranch_scc1 %s" % (sW, POLLW, l))
        w.e("s_mov_b32 s%d, 0" % sSPIN)
        if n is not None:
            w.e("s_waitcnt vmcnt(%d)" % n)
        w.e(lp + ":")
        w.e("v_readfirstlane_b32 s%d, v%d" % (sT2, P + 2))
        w.e("s_cmp_ge_u32 s%d, 8\ns_cbranch_scc1 %s" % (sT2, l))
        w.e("s_add_u32 s%d, s%d, 1\ns_cmp_ge_u32 s%d, 0x40000\ns_cbranch_scc1 %s" % (sSPIN, sSPIN, sSPIN, l))
        w.e("buffer_load_dword v%d, off, %s, 0 sc1" % (P + 2, srd(SDBG)))
        w.e("s_waitcnt vmcnt(0)\ns_branch %s" % lp)
        w.e(l + ":")

    hooks_pre[1] = [bias_to_lds]
    hooks_post[0] = [init_signal, lambda: stamp(w, 1)]
    hooks_post[4] = [init_poll_issue]
    hooks_pre[8] = [init_poll_check]

    release(-1)
    for _ in range(3): VQ.pop(0)()
    w.vmem("buffer_load_ushort v%d, v%d, %s, 0 offen" % (P, P + 1, srd(SB1)), "bias")
    late_setup(w, F)
    per = F.total() / 5.0
    for k in range(5):
        F.pull(per)
        for _ in range(3): VQ.pop(0)()
    F.drain()
    for i in range(PF):
        reads(i)

    events = {}

    def at(i, fn):
        events.setdefault(i, []).append(fn)

    pstart = [min(i for i in range(NS) if steps[i]["pi"] == p) for p in range(len(passes))]
    plast = pstart[-1]
    deadline = {}

    def stats_chunk(c):
        def fn():
            w.wait(lg="xr")
            for k in range(16):
                x = XR + 16 * c + k
                acc = vS0 if k % 2 == 0 else vS1
                if ch == 0:
                    w.e("v_dot2c_f32_bf16 v%d, s%d, v%d" % (acc, sONE, x))
                else:
                    w.e("v_dot2c_f32_bf16 v%d, v%d, v%d" % (acc, x, x))
        return fn

    for c in range(8):
        at(4 * c + 2 * ch if c < 7 else 27, stats_chunk(c))

    def stats_write():
        w.e("v_add_f32 v%d, v%d, v%d" % (vS0, vS0, vS1))
        w.e("v_lshlrev_b32 v%d, 2, v0\nv_add_u32 v%d, %d, v%d" % (vS1, vS1, MISC + ST, vS1))
        w.lds("ds_write_b32 v%d, v%d" % (vS1, vS0), "stw")
        w.e("v_and_b32 v%d, 0xdf, v0\nv_lshlrev_b32 v%d, 2, v%d" % (vS0, vS0, vS0))
        w.e("v_add_u32 v%d, %d, v%d\nv_add_u32 v%d, %d, v%d" % (vS1, MISC + ST + 1024, vS0, vS0, MISC + ST, vS0))

    at(28, stats_write)

    def cs_add(tile):
        return lambda: w.lds("ds_write_b32 v%d, v%d offset:%d" % (vCSW, CSA, tile * 256), "csadd")

    def csw_addr():
        assert "X7_1" in seen
        w.e("s_and_b32 s%d, s%d, 3\ns_lshl_b32 s%d, s%d, 11\ns_add_u32 s%d, s%d, %d" % (sT2, sW, sT2, sT2, sT2, sT2, MISC + CSP))
        w.e("v_lshlrev_b32 v%d, 2, v%d\nv_add_u32 v%d, s%d, v%d" % (vCSW, vLANE, vCSW, sT2, vCSW))

    at(21, csw_addr)
    for p in range(len(passes)):
        d0 = steps[pstart[p]]
        at(pstart[p] + d0["n"] - 3, cs_add(d0["tile"] + (ch if d0["hc"] else 0)))

    PA1, PD1 = 128, 132

    def poll_addr():
        w.e("v_lshrrev_b32 v%d, 2, v%d\nv_lshlrev_b32 v%d, 11, v%d" % (PA1, vLANE, PA1, PA1))
        w.e("v_and_b32 v%d, 3, v%d\nv_lshl_add_u32 v%d, v%d, 4, v%d" % (PD1, vLANE, PA1, PD1, PA1))
        w.e("v_add_u32 v%d, %d, v%d" % (PA1, KVO + FLAG_OFF, PA1))

    def early_loads():
        w.e("v_lshlrev_b32 v%d, 4, v%d\nv_mov_b32 v%d, v%d" % (vA, vLANE, vPA, PA1))
        for m in range(4):
            for s in range(4):
                VQ.append(lambda m=m, s=s: a_load(w, m, s))

    if not kv:
        def q_p1():
            stats_finish(w, F, False)
            epi_swapped(w, F, "gelu", ACC["A"], ch, [0, 1, 2, 3], sST[0], "stA")

        def hc_addr():
            w.e("v_lshrrev_b32 v%d, 5, v%d\nv_lshlrev_b32 v%d, 9, v%d" % (T, vLANE, T, T))
            w.e("v_bfe_u32 v%d, v%d, 2, 2\nv_lshl_add_u32 v%d, v%d, 6, v%d" % (T + 1, vLANE, T, T + 1, T))
            w.e("v_bfe_u32 v%d, v%d, 4, 1\nv_lshl_add_u32 v%d, v%d, 5, v%d" % (T + 1, vLANE, T, T + 1, T))
            w.e("v_and_b32 v%d, 3, v%d\nv_lshl_add_u32 v%d, v%d, 3, v%d" % (T + 1, vLANE, T, T + 1, T))
            w.e("s_and_b32 s%d, s%d, 3" % (sT2, sW))
            for p in range(4):
                w.e("s_xor_b32 s%d, s%d, %d\ns_lshl_b32 s%d, s%d, 10" % (sT3, sT2, p, sT3, sT3))
                w.e("v_add_u32 v%d, s%d, v%d" % (vX[p], sT3, T))
            win["X"] = 0

        at(31, hc_addr)
        at(31, q_p1)
        deadline[31] = pstart[2] - 1
        at(pstart[2], lambda: epi_swapped(w, F, "gelu", ACC["B"], 2 + ch, [0, 1, 2, 3], sST[1], "stB"))
        deadline[pstart[2]] = plast + 12
        send = ACC["C"] + (8 if ch == 0 else 0)
        keep = ACC["C"] + (0 if ch == 0 else 8)

        def xch_write():
            w.e("v_lshlrev_b32 v%d, 4, v0\nv_add_u32 v%d, %d, v%d" % (vS0, vS0, xch, vS0))
            w.lds("ds_write_b128 v%d, %s" % (vS0, vr(send)), "xchw")
            w.lds("ds_write_b128 v%d, %s offset:8192" % (vS0, vr(send + 4)), "xchw")
            w.e("v_xor_b32 v%d, 4096, v%d" % (vS1, vS0) if xch % 8192 == 0 and (xch // 4096) % 2 == 0 else "BAD")

        at(plast + 1, xch_write)

        def xch_read():
            w.lds("ds_read_b128 %s, v%d" % (vr(send), vS1), "xchr")
            w.lds("ds_read_b128 %s, v%d offset:8192" % (vr(send + 4), vS1), "xchr")

        def hc_epi():
            F.add(lambda: w.wait(lg="xchr"), 0.01)
            for j in range(8):
                F.ins(w, "v_add_f32 v%d, v%d, v%d" % (keep + j, keep + j, send + j))
            epi_swapped(w, F, "gelu", ACC["C"], 4, [2 * ch, 2 * ch + 1], sST[2], "stC", cs_tiles=[4, 5])

        hooks_post[15] = [xch_read]
        at(plast + 13, hc_epi)
        deadline[plast + 13] = NS - 2
        pre_tags[14] = ("stA",)
        hooks_post[14] = [lambda: publish(w, 1, vS0)]
        at(plast + 11, poll_addr)
        at(plast + 11, lambda: poll_issue(w, PD1, PA1))
        hooks_pre[17] = [lambda: poll_check(w, 1, 1, 0, PD1, PA1)]
        pre_tags[17] = ("stB",)
        hooks_post[17] = [lambda: publish(w, 2, vS0), early_loads]
    else:
        PK, VV, D1, vZ = 64, 72, 88, vS1

        def kv_p1():
            stats_finish(w, F, True)
            epi_swapped(w, F, "gelu", ACC["A"], 4 + ch, [0, 1, 2, 3], sST[2], "stA")

        def kv_p2():
            cs_sum(w, F, [ch], vS0, False)
            epi_group_reads(w, F, "k", 0, 0, 0)
            for i in range(4):
                if i < 3: epi_group_reads(w, F, "k", 0, i + 1, (i + 1) & 1)
                if i == 0: F.add(lambda: None, 4.0)
                epi_group(w, F, "k", ACC["B"] + 4 * i, i & 1, PK + 2 * i, cs=vS0)
                F.ins(w, "v_add_f32 v%d, v%d, v%d" % (T, T, T + 1))
                F.ins(w, "v_add_f32 v%d, v%d, v%d" % (T + 2, T + 2, T + 3))
                if i == 0:
                    F.ins(w, "v_add_f32 v%d, v%d, v%d" % (vZ, T, T + 2))
                else:
                    F.ins(w, "v_add_f32 v%d, v%d, v%d" % (T, T, T + 2))
                    F.ins(w, "v_add_f32 v%d, v%d, v%d" % (vZ, vZ, T))
            F.ins(w, "v_lshlrev_b32 v%d, 2, v0" % T)
            F.ins(w, "v_add_u32 v%d, %d, v%d" % (T, MISC + ST, T))
            F.add(lambda: w.lds("ds_write_b32 v%d, v%d" % (T, vZ), "kvadd"), 0.0)

        at(31, kv_p1)
        deadline[31] = pstart[2] - 1
        at(pstart[2], kv_p2)
        deadline[pstart[2]] = NS - 3
        pre_tags[13] = ("stA",)
        hooks_post[13] = [lambda: publish(w, 1, OUTR[0])]
        at(plast + 22, poll_addr)
        at(plast + 22, lambda: poll_issue(w, PD1, PA1))
        hooks_pre[16] = [lambda: poll_check(w, 1, 1, 0, PD1, PA1)]
        hooks_post[16] = [early_loads]

    rate, dl = 0.0, None
    for i, d in enumerate(steps):
        fr = WF + 4 * (i % 4)
        w.wait(lg=("f%d" % i,) + (("xr",) if d["pi"] == 0 and d["s"] % 4 == 0 else ()))
        a, b = (fr, d["x"]) if d["swapped"] else (d["x"], fr)
        w.e("v_mfma_f32_32x32x16_bf16 %s, %s, %s, %s" % (vr(d["acc"], 16), vr(a), vr(b), "0" if d["s"] == 0 else vr(d["acc"], 16)))
        if d["s"] % 4 == 0:
            w.e("v_mfma_f32_16x16x32_bf16 %s, %s, %s, %s" % (vr(CSA), vr(SEL), vr(fr), "0" if d["s"] == 0 else vr(CSA)))
        used = 0.0
        if VQ and (d["pi"] == 0 or len(VQ) > 3 or (i + ch) % 2 == 0):
            VQ.pop(0)()
            used = C_VM
            if len(VQ) > 2 * (NS - i):
                VQ.pop(0)()
        for fn in events.get(i, []): fn()
        if Opt.p1stamps and i in Opt.p1stamps:
            stamp(w, 2 + Opt.p1stamps.index(i), True)
        if i + PF < NS:
            reads(i + PF)
        elif i + PF == NS:
            barrier(nb, [])
        if i in deadline:
            dl = deadline[i]
        if dl is not None and i <= dl:
            F.pull(F.total() / (dl - i + 1) - (1.0 if used else 0.0))
            if i == dl:
                F.drain()
    F.drain()
    stamp(w, 2)
    if not kv:
        assert sorted(issue_at.keys()) == [], issue_at.keys()
        poll_issue(w)
        epi_swapped(w, F, "phi", ACC["A"], 6 + ch, [0, 1, 2, 3], sST[3], "stL")
        k = 0
        while F.q:
            F.pull(8.0)
            if VQ: VQ.pop(0)()
        while VQ: VQ.pop(0)()
        poll_check(w, 2, 0, 0)
        w.wait(vm=("stC", "W2_0"))
        w.wait_lg_all()
        w.e("s_barrier")
        publish(w, 3, T)
    else:
        cs_sum(w, F, [2 + ch], vS0, False)
        epi_group_reads(w, F, "v", 0, 0, 0)
        for i in range(4):
            if i < 3: epi_group_reads(w, F, "v", 0, i + 1, (i + 1) & 1)
            epi_group(w, F, "v", ACC["A"] + 4 * i, i & 1, VV + 2 * i, cs=vS0)
        while F.q:
            F.pull(3.0)
            if VQ: VQ.pop(0)()
        for s in range(2):
            w.e("v_mfma_f32_32x32x16_bf16 %s, %s, %s, %s" % (vr(D1, 16), vr(PK + 4 * s), vr(VV + 4 * s), "0" if s == 0 else vr(D1, 16)))
        while VQ: VQ.pop(0)()
        poll_issue(w)
        w.e("v_lshlrev_b32 v%d, 2, v%d" % (T, vLANE))
        w.e("s_lshl_b32 s%d, s%d, 1\ns_add_u32 s%d, s%d, %d" % (sT2, sWL, sT2, sT2, xch))
        w.e("v_add_u32 v%d, s%d, v%d" % (T, sT2, T))
        A0 = ACC["B"]
        w.e("s_lshr_b32 s%d, s%d, 1\ns_and_b32 s%d, s%d, 1" % (sT2, sW, sT3, sW))
        w.e("v_and_b32 v%d, 3, v%d\nv_lshlrev_b32 v%d, 8, v%d" % (P, vLANE, P, P))
        w.e("v_and_b32 v%d, 0x3c, v%d\nv_add_u32 v%d, v%d, v%d" % (P + 1, vLANE, P, P, P + 1))
        w.e("s_lshr_b32 s%d, s%d, 2\ns_lshl_b32 s%d, s%d, 13" % (sSPIN, sW, sSPIN, sSPIN))
        w.e("s_lshl_b32 s%d, s%d, 10\ns_add_u32 s%d, s%d, s%d" % (sTMP, sT3, sSPIN, sSPIN, sTMP))
        w.e("s_and_b32 s%d, s%d, 1\ns_lshl_b32 s%d, s%d, 6\ns_add_u32 s%d, s%d, s%d" % (sTMP, sT2, sTMP, sTMP, sSPIN, sSPIN, sTMP))
        w.e("s_add_u32 s%d, s%d, %d" % (sSPIN, sSPIN, xch))
        w.e("v_add_u32 v%d, s%d, v%d\nv_add_u32 v%d, 128, v%d" % (P, sSPIN, P, P + 1, P))
        w.e("v_and_b32 v%d, 31, v%d\nv_lshrrev_b32 v%d, 5, v%d" % (P + 2, vLANE, P + 3, vLANE))
        w.e("v_lshl_add_u32 v%d, v%d, 8, v%d\nv_lshlrev_b32 v%d, 2, v%d\nv_add_u32 v%d, %d, v%d" % (P + 2, P + 3, P + 2, P + 2, P + 2, P + 2, MISC + ST, P + 2))
        for r in range(8):
            w.e("v_cndmask_b32 v%d, v%d, v%d, s[%d:%d]" % (D1 + r, D1 + 8 + r, D1 + r, sLO, sLO + 1))
        for r in range(0, 8, 2):
            w.lds("ds_write2st64_b32 v%d, v%d, v%d offset0:%d offset1:%d" % (T, D1 + r, D1 + r + 1, r, r + 1), "kvadd")
        w.wait_lg_all()
        w.e("s_barrier")
        release(nb + 1)
        for qq in range(2):
            w.lds("ds_read2st64_b32 %s, v%d offset0:0 offset1:8" % (vr(A0 + 4 * qq, 2), P + qq), "kvr")
            w.lds("ds_read2st64_b32 %s, v%d offset0:16 offset1:24" % (vr(A0 + 4 * qq + 2, 2), P + qq), "kvr")
        for tb in range(4):
            w.lds("ds_read2_b32 %s, v%d offset0:%d offset1:%d" % (vr(A0 + 8 + 2 * tb, 2), P + 2, 64 * tb, 64 * tb + 32), "kvz")
        while VQ: VQ.pop(0)()
        assert sorted(issue_at.keys()) == [], issue_at.keys()
        w.e("s_lshl_b32 s%d, s%d, 11\ns_lshl_b32 s%d, s%d, 9" % (sT2, sT2, sT3, sT3))
        w.e("s_add_u32 s%d, s%d, s%d\ns_add_u32 s%d, s%d, s%d" % (sT2, sT2, sT3, sT2, sT2, sKVA))
        w.e("v_lshlrev_b32 v%d, 2, v%d" % (T, vLANE))
        w.e("v_lshrrev_b32 v%d, 4, v%d\nv_and_b32 v%d, 15, v%d" % (T + 2, vLANE, T + 3, vLANE))
        w.e("v_lshlrev_b32 v%d, 2, v%d\nv_lshl_add_u32 v%d, v%d, 11, v%d" % (T + 3, T + 3, T + 3, T + 2, T + 3))
        w.wait(lg="kvr")
        for qq in range(2):
            a = A0 + 4 * qq
            w.e("v_add_f32 v%d, v%d, v%d\nv_add_f32 v%d, v%d, v%d\nv_add_f32 v%d, v%d, v%d" % (a, a, a + 1, a + 2, a + 2, a + 3, a, a, a + 2))
            w.vmem("buffer_atomic_add_f32 v%d, v%d, %s, s%d offen offset:%d" % (a, T, srd(SWS), sT2, 256 * qq), "stL")
        w.wait(lg="kvz")
        a = A0 + 8
        for j in range(4): w.e("v_add_f32 v%d, v%d, v%d" % (a + j, a + j, a + 4 + j))
        w.e("v_add_f32 v%d, v%d, v%d\nv_add_f32 v%d, v%d, v%d\nv_add_f32 v%d, v%d, v%d" % (a, a, a + 1, a + 2, a + 2, a + 3, a, a, a + 2))
        w.e("s_cmp_eq_u32 s%d, 2\ns_cselect_b32 s%d, s%d, 0x7ff00000" % (sW, sT2, sKVA))
        w.vmem("buffer_atomic_add_f32 v%d, v%d, %s, s%d offen offset:1024" % (a, T + 3, srd(SWS), sT2), "stL")
        poll_check(w, 2, 0, 0)
        w.wait(vm=("W2_0",))
        w.wait_lg_all()
        w.e("s_barrier")
    w.e("s_branch L_phase2")
    return w


def phase2(vmqs):
    w = Stream(vmqs)
    vWR, vKE, vKO, vPW, vPR, vOUT = 8, 12, 13, 14, 15, 7
    vKW, vKR, KVL = 232, 233, 131072
    WFR, YA, SA, KVB = 16, 32, 64, 96
    D = [144, 160]
    OP, G, XRES, B2R, TM = 200, 208, 216, 220, 224
    w.e("L_phase2:")
    w.c("==== phase 2")
    stamp(w, 3)
    if Opt.p2stamps:
        stamp(w, 1, True)
    w.e("s_and_b32 s%d, s%d, 3" % (sT2, sW))
    w.e("v_lshrrev_b32 v%d, 5, v%d\nv_lshlrev_b32 v%d, 9, v%d" % (TM, vLANE, TM, TM))
    w.e("v_bfe_u32 v%d, v%d, 2, 2\nv_lshl_add_u32 v%d, v%d, 7, v%d" % (TM + 1, vLANE, TM, TM + 1, TM))
    w.e("v_bfe_u32 v%d, v%d, 3, 1\nv_lshl_add_u32 v%d, v%d, 6, v%d" % (TM + 1, vLANE, TM, TM + 1, TM))
    w.e("v_bfe_u32 v%d, v%d, 4, 1\nv_lshl_add_u32 v%d, v%d, 5, v%d" % (TM + 1, vLANE, TM, TM + 1, TM))
    w.e("v_and_b32 v%d, 3, v%d\nv_lshl_add_u32 v%d, v%d, 3, v%d" % (TM + 1, vLANE, TM, TM + 1, TM))
    w.e("s_lshl_b32 s%d, s%d, 13\nv_add_u32 v%d, s%d, v%d" % (sTMP, sT2, vWR, sTMP, TM))
    w.e("v_xor_b32 v%d, 64, v%d" % (vWR + 1, vWR))

    F = Fill()
    L = ["v_add_u32 v%d, 0x10000, v%d" % (vWR + 2, vWR), "v_add_u32 v%d, 0x10000, v%d" % (vWR + 3, vWR + 1)]
    L += ["v_lshrrev_b32 v%d, 3, v0" % TM, "v_lshlrev_b32 v%d, 10, v%d" % (TM, TM), "v_and_b32 v%d, 7, v0" % (TM + 1), "v_lshlrev_b32 v%d, 4, v%d" % (TM + 1, TM + 1),
          "v_add_u32 v%d, v%d, v%d" % (vOUT, TM, TM + 1),
          "s_lshl_b32 s%d, s%d, 16" % (sXB, sTP), "s_lshl_b32 s%d, s%d, 7" % (sT3, sCB), "s_add_u32 s%d, s%d, s%d" % (sXB, sXB, sT3)]
    for s in L: F.ins(w, s)
    F.add(lambda: w.vmem("buffer_load_dwordx4 %s, v%d, %s, s%d offen" % (vr(XRES), vOUT, srd(SX), sXB), "xres"), 1)
    F.add(lambda: w.vmem("buffer_load_dwordx4 %s, v%d, %s, s%d offen" % (vr(B2R), TM + 1, srd(SB2), sT3), "b2"), 1)
    L = ["v_lshrrev_b32 v%d, 5, v%d" % (TM, vLANE), "v_and_b32 v%d, 15, v%d" % (TM + 1, vLANE), "v_lshl_add_u32 v%d, v%d, 4, v%d" % (TM + 1, TM, TM + 1),
         "v_lshlrev_b32 v%d, 4, v%d" % (TM + 1, TM + 1), "v_lshlrev_b32 v%d, 4, v%d" % (TM, TM), "v_add_u32 v%d, 1024, v%d" % (TM, TM),
         "v_cndmask_b32 v%d, v%d, v%d, s[%d:%d]" % (vKE, TM, TM + 1, sLO, sLO + 1), "v_cndmask_b32 v%d, v%d, v%d, s[%d:%d]" % (vKO, TM + 1, TM, sLO, sLO + 1),
         "v_add_u32 v%d, 512, v%d" % (TM + 1, TM + 1), "v_add_u32 v%d, 32, v%d" % (TM, TM),
         "v_cndmask_b32 v4, v%d, v%d, s[%d:%d]" % (TM, TM + 1, sLO, sLO + 1), "v_cndmask_b32 v5, v%d, v%d, s[%d:%d]" % (TM + 1, TM, sLO, sLO + 1),
         "s_lshr_b32 s%d, s%d, 2" % (sT3, sW), "s_lshl_b32 s%d, s%d, 1" % (sKVA, sT2), "s_add_u32 s%d, s%d, s%d" % (sT3, sT3, sKVA),
         "s_lshl_b32 s%d, s%d, 13" % (sKVA, sT3), "s_add_u32 s%d, s%d, %d" % (sKVA, sKVA, KVO),
         "s_lshl_b32 s%d, s%d, 12" % (sT3, sT3), "s_add_u32 s%d, s%d, %d" % (sT3, sT3, KVL), "v_add_u32 v%d, s%d, v%d" % (vKW, sT3, vA),
         "s_lshl_b32 s%d, s%d, 13" % (sT3, sT2), "s_add_u32 s%d, s%d, %d" % (sT3, sT3, KVL), "v_add_u32 v%d, s%d, v%d" % (vKR, sT3, vA)]
    L += ["v_and_b32 v%d, 31, v%d" % (TM, vLANE), "v_lshrrev_b32 v%d, 5, v%d" % (TM + 1, vLANE), "v_and_b32 v%d, 7, v%d" % (TM + 2, vLANE),
          "v_xor_b32 v%d, v%d, v%d" % (TM + 1, TM + 1, TM + 2), "v_lshlrev_b32 v%d, 8, v%d" % (TM, TM), "v_lshl_add_u32 v%d, v%d, 4, v%d" % (TM, TM + 1, TM),
          "s_lshr_b32 s%d, s%d, 2" % (sT3, sW), "s_lshl_b32 s%d, s%d, 13" % (sT3, sT3), "s_lshl_b32 s%d, s%d, 14" % (sT2, sT2),
          "s_add_u32 s%d, s%d, s%d" % (sT3, sT3, sT2), "s_add_u32 s%d, s%d, %d" % (sT3, sT3, PY), "v_add_u32 v%d, s%d, v%d" % (vPW, sT3, TM)]
    L += ["v_lshrrev_b32 v%d, 3, v0" % TM, "v_and_b32 v%d, 7, v%d" % (TM + 1, TM), "v_and_b32 v%d, 7, v0" % (TM + 2), "v_lshlrev_b32 v%d, 1, v%d" % (TM + 2, TM + 2),
          "v_xor_b32 v%d, v%d, v%d" % (TM + 1, TM + 1, TM + 2), "v_lshlrev_b32 v%d, 8, v%d" % (TM, TM), "v_lshl_add_u32 v%d, v%d, 4, v%d" % (TM, TM + 1, TM),
          "v_add_u32 v%d, %d, v%d" % (vPR, PY, TM)]
    for s in L: F.ins(w, s)

    def w_reads(m, s):
        base = (m % 4) * 32768 + s * 2048
        hi = base >= 65536
        fr = WFR + 8 * (s % 2)
        for t in range(2):
            a = vWR + t + (2 if hi else 0)
            o = base - (65536 if hi else 0)
            w.lds("ds_read_b64_tr_b16 %s, v%d offset:%d" % (vr(fr + 4 * t, 2), a, o), "w%d" % s)
            w.lds("ds_read_b64_tr_b16 %s, v%d offset:%d" % (vr(fr + 4 * t + 2, 2), a, o + 1024), "w%d" % s)

    def kv_load(h):
        r = SA + 8 * (h % 4)
        w.e("s_add_u32 s%d, s%d, %d" % (sTMP, sKVA, 2048 * h))
        w.vmem("buffer_load_dwordx4 %s, v%d, %s, s%d offen sc1" % (vr(r), vKE if h % 2 == 0 else vKO, srd(SWS), sTMP), "kv%d" % h)
        w.vmem("buffer_load_dwordx4 %s, v%d, %s, s%d offen sc1" % (vr(r + 4), 4 if h % 2 == 0 else 5, srd(SWS), sTMP), "kv%d" % h)

    def kv_cvt(h):
        w.wait(vm="kv%d" % h)
        r = SA + 8 * (h % 4)
        for j in range(4):
            w.e("v_cvt_pk_bf16_f32 v%d, v%d, v%d" % (KVB + 4 * h + j, r + 2 * j, r + 2 * j + 1))
        w.lds("ds_write_b128 v%d, %s offset:%d" % (vKW, vr(KVB + 4 * h), 1024 * h), "kvw")

    def part_write(acc, tag):
        for i in range(4):
            if i == 0:
                a = vPW
            else:
                a = TM + i
                w.e("v_xor_b32 v%d, %d, v%d" % (a, 32 * i, vPW))
            for t in range(2):
                w.lds("ds_write_b128 v%d, %s offset:%d" % (a, vr(acc + 16 * t + 4 * i), 128 * t), tag)

    def part_read(dst, tag):
        w.e("v_xor_b32 v%d, 16, v%d" % (TM, vPR))
        for k in range(4):
            w.lds("ds_read_b128 %s, v%d offset:%d" % (vr(dst + 8 * k), vPR, 16384 * k), tag)
            w.lds("ds_read_b128 %s, v%d offset:%d" % (vr(dst + 8 * k + 4), TM, 16384 * k), tag)

    def part_sum(dst):
        for j in range(8): w.e("v_add_f32 v%d, v%d, v%d" % (dst + j, dst + j, dst + 8 + j))
        for j in range(8): w.e("v_add_f32 v%d, v%d, v%d" % (dst + 16 + j, dst + 16 + j, dst + 24 + j))
        for j in range(8): w.e("v_add_f32 v%d, v%d, v%d" % (dst + j, dst + j, dst + 16 + j))

    def num_mfma(h):
        m, s = 7 + h // 4, h % 4
        w.wait(vm="A%d_%d" % (m, s), lg="kb%d" % h)
        w.e("v_mfma_f32_32x32x16_bf16 %s, %s, %s, 0" % (vr(D[h % 2], 16), vr(KVB + 4 * h), vr(AR + 16 * (m % 4) + 4 * s)))

    def o_valu(h):
        d = D[h % 2]
        num, den = (d, d + 8) if h % 2 == 0 else (d + 8, d)
        o = OP + 4 * (h % 2)
        w.e("v_add_f32 v%d, s%d, v%d" % (den, sEPS, den))
        w.e("v_rcp_f32 v%d, v%d" % (den, den))
        for j in range(8): w.e("v_mul_f32 v%d, v%d, v%d" % (num + j, num + j, den))
        for j in range(4): w.e("v_cvt_pk_bf16_f32 v%d, v%d, v%d" % (o + j, num + 2 * j, num + 2 * j + 1))

    checks = {3: (3, 0, 0), 4: (4, 0, 4)}
    aload_in = {0: 4, 1: 5, 3: 6, 4: 8}
    for m in range(9):
        w.c("chunk %d" % m)
        if m > 0:
            if m in checks:
                poll_check(w, *checks[m])
            w.wait(vm=("W2_%d" % m,) + (("stL",) if m == 2 else ()))
            w.wait_lg_all()
            w.e("s_barrier")
            if Opt.p2stamps and m < 7:
                stamp(w, 1 + m, True)
        if m == 2:
            publish(w, 4, TM + 4)
        if (m + 1) in checks:
            poll_issue(w)
        if m == 7:
            for h in range(8):
                w.lds("ds_read_b128 %s, v%d offset:%d" % (vr(KVB + 4 * h), vKR, 1024 * h), "kb%d" % h)
        w_reads(m, 0)
        if m == 7:
            stamp(w, 5)
            num_mfma(0)
            part_write(YA, "py")
        if m == 8:
            part_read(YA, "pyr")
        for s in range(4):
            if s < 3:
                w_reads(m, s + 1)
            if m == 4:
                a_load(w, 7, s)
                kv_load(s)
            if 1 <= m <= 5:
                w2_dma(w, m + 3, s)
            fr = WFR + 8 * (s % 2)
            if m < 7:
                ar = AR + 16 * (m % 4) + 4 * s
                w.wait(vm="A%d_%d" % (m, s), lg="w%d" % s)
                for t in range(2):
                    w.e("v_mfma_f32_32x32x16_bf16 %s, %s, %s, %s" % (vr(YA + 16 * t, 16), vr(fr + 4 * t), vr(ar), "0" if (m == 0 and s == 0) else vr(YA + 16 * t, 16)))
                if m in aload_in:
                    a_load(w, aload_in[m], s)
                if m == 6:
                    kv_cvt(s)
                F.pull(12)
            else:
                h = 4 * (m - 7) + s
                if h + 1 < 8:
                    num_mfma(h + 1)
                o_valu(h)
                w.wait(lg="w%d" % s)
                for t in range(2):
                    w.e("v_mfma_f32_32x32x16_bf16 %s, %s, %s, %s" % (vr(SA + 16 * t, 16), vr(fr + 4 * t), vr(OP + 4 * (h % 2)), "0" if h == 0 else vr(SA + 16 * t, 16)))
                if m == 8 and s == 1:
                    w.wait(vm="b2", lg="pyr")
                    part_sum(YA)
                    for j in range(4):
                        w.e("v_lshlrev_b32 v%d, 16, v%d\nv_and_b32 v%d, 0xffff0000, v%d" % (TM + 2 * j, B2R + j, TM + 2 * j + 1, B2R + j))
                    for j in range(8): w.e("v_add_f32 v%d, v%d, v%d" % (YA + j, YA + j, TM + j))
                    for j in range(8): w.e("v_mul_f32 v%d, %s, v%d" % (G + j, f32(-LOG2E), YA + j))
                    for j in range(8): w.e("v_exp_f32 v%d, v%d" % (G + j, G + j))
                    for j in range(8): w.e("v_add_f32 v%d, 1.0, v%d" % (G + j, G + j))
                    for j in range(8): w.e("v_rcp_f32 v%d, v%d" % (G + j, G + j))
                    for j in range(8): w.e("v_mul_f32 v%d, v%d, v%d" % (G + j, G + j, YA + j))
        if m == 1:
            F.drain()
    stamp(w, 6)
    w.e("v_add_u32 v%d, 0x10000, v%d\nv_add_u32 v%d, 0x10000, v%d" % (vPW, vPW, vPR, vPR))
    part_write(SA, "ps")
    w.wait(vm="xres")
    for j in range(4):
        w.e("v_lshlrev_b32 v%d, 16, v%d\nv_and_b32 v%d, 0xffff0000, v%d" % (OP + 2 * j, XRES + j, OP + 2 * j + 1, XRES + j))
    w.wait_lg_all()
    w.e("s_barrier")
    part_read(YA, "psr")
    w.wait_lg_all()
    part_sum(YA)
    for j in range(8): w.e("v_fma_f32 v%d, v%d, v%d, v%d" % (YA + j, YA + j, G + j, OP + j))
    for j in range(4): w.e("v_cvt_pk_bf16_f32 v%d, v%d, v%d" % (YA + 8 + j, YA + 2 * j, YA + 2 * j + 1))
    w.e("buffer_store_dwordx4 %s, v%d, %s, s%d offen" % (vr(YA + 8), vOUT, srd(SOUT), sXB))
    if Opt.stamps:
        stamp(w, 7)
        l = label("st")
        w.e("s_cmp_lg_u32 s%d, 0\ns_cbranch_scc1 %s\ns_waitcnt lgkmcnt(0)" % (sW, l))
        for j in range(8): w.e("v_mov_b32 v%d, s%d" % (16 + j, sTS + 2 * j))
        w.e("s_lshl_b32 s%d, s2, 5\ns_add_u32 s%d, s%d, %d\nv_mov_b32 v2, 0\ns_mov_b64 exec, 1" % (sTMP, sTMP, sTMP, WS_BYTES))
        w.e("buffer_store_dwordx4 v[16:19], v2, %s, s%d offen\nbuffer_store_dwordx4 v[20:23], v2, %s, s%d offen offset:16" % (srd(SWS), sTMP, srd(SWS), sTMP))
        w.e(l + ":")
    w.e("s_endpgm")
    return w


def prologue():
    w = Stream()
    stamp(w, 0)
    w.e("s_cmp_ge_u32 s2, 256\ns_cbranch_scc1 L_exit")
    for r, off in ((SX, 0), (SW1, 32), (SWS, 80), (SB1, 40), (SWQ, 8), (SW2, 48), (SWO, 16), (SB2, 56), (SOUT, 64), (SDBG, 72)):
        w.e("s_load_dwordx2 s[%d:%d], s[0:1], %d" % (r, r + 1, off))
    w.e("v_lshrrev_b32 v2, 6, v0\nv_and_b32 v%d, 63, v0" % vLANE)
    w.e("v_readfirstlane_b32 s%d, v2" % sW)
    for r, n in ((SX, 2097152), (SWQ, 1572864), (SW1, 1835008), (SWS, WS_BYTES + (8192 if Opt.stamps else 0)), (SB1, 3584), (SW2, 1835008), (SWO, 524288), (SB2, 1024), (SOUT, 2097152), (SDBG, 256)):
        w.e("s_mov_b32 s%d, %d\ns_mov_b32 s%d, 0x20000" % (r + 2, n, r + 3))
    w.e("s_lshr_b32 s3, s2, 3\ns_and_b32 s%d, s3, 7\ns_lshr_b32 s4, s3, 3" % sCB)
    w.e("s_and_b32 s5, s2, 1\ns_lshl_b32 s5, s5, 3\ns_add_u32 s%d, s5, s%d" % (sRB, sCB))
    w.e("s_bfe_u32 s5, s2, 0x20001\ns_lshl_b32 s5, s5, 2\ns_add_u32 s%d, s5, s4" % sG)
    w.e("s_and_b32 s5, s2, 7\ns_lshl_b32 s5, s5, 2\ns_add_u32 s%d, s5, s4" % sTP)
    w.e("s_lshl_b32 s%d, s%d, 10" % (sWL, sW))
    w.e("s_lshl_b32 s%d, s%d, 17" % (sXB, sRB))
    w.e("s_lshr_b32 s3, s%d, 1\ns_lshr_b32 s4, s%d, 2\ns_and_b32 s5, s3, 1\ns_mul_i32 s4, s4, 448" % (sG, sG))
    w.e("s_mul_i32 s6, s5, 192\ns_add_u32 s6, s6, s4\ns_add_u32 s6, s6, 64")
    w.e("s_lshl_b32 s7, s5, 5\ns_add_u32 s7, s7, s4\ns_add_u32 s7, s7, 192")
    w.e("s_mul_i32 s5, s5, 384\ns_add_u32 s5, s5, s4")
    w.e("s_lshl_b32 s4, s3, 7")
    w.e("s_mul_i32 s%d, s%d, %d" % (sT3, sRB, 4 * TOKBLK))
    w.e("s_lshr_b32 s%d, s%d, 2\ns_lshl_b32 s%d, s%d, 11\ns_add_u32 s%d, s%d, s%d" % (sT2, sW, sT2, sT2, sT2, sT2, sT3))
    w.e("v_lshrrev_b32 v16, 3, v0\nv_and_b32 v17, 7, v0")
    w.e("v_bfe_u32 v18, v0, 4, 3\nv_xor_b32 v18, v17, v18\nv_lshlrev_b32 v18, 4, v18")
    w.e("v_lshl_add_u32 v%d, v16, 10, v18" % vXD)
    w.e("v_bfe_u32 v18, v0, 4, 1\nv_lshlrev_b32 v18, 2, v18\nv_xor_b32 v18, v17, v18\nv_lshlrev_b32 v18, 4, v18")
    w.e("s_movk_i32 s%d, 3072\nv_mad_u32_u24 v%d, v16, s%d, v18" % (sTMP, vAD, sTMP))
    w.e("s_movk_i32 s%d, 3584\nv_mad_u32_u24 v%d, v16, s%d, v18" % (sTMP, vBD, sTMP))
    w.e("v_lshl_add_u32 v%d, v16, 10, v18\ns_lshl_b32 s%d, s%d, 7\nv_add_u32 v%d, s%d, v%d" % (vW2D, sSPIN, sCB, vW2D, sSPIN, vW2D))
    w.e("v_lshrrev_b32 v16, 2, v0\nv_and_b32 v17, 3, v0\nv_lshlrev_b32 v17, 4, v17\nv_mad_u32_u24 v%d, v16, s%d, v17" % (vHD, sTMP))
    w.e("s_bitcmp1_b32 s%d, 0\ns_cbranch_scc1 L_setup_kv" % sG)
    w.e("s_lshl_b32 s%d, s6, 1\ns_add_u32 s%d, s%d, 128\ns_lshl_b32 s%d, s7, 1\ns_mov_b32 s%d, s4" % (sCOL[0], sCOL[1], sCOL[0], sCOL[2], sCOL[3]))
    w.e("s_lshl_b32 s%d, s6, 6\ns_add_u32 s%d, s%d, s%d\ns_add_u32 s%d, s%d, 4096" % (sST[0], sST[0], sST[0], sT2, sST[1], sST[0]))
    w.e("s_lshl_b32 s%d, s7, 6\ns_add_u32 s%d, s%d, s%d" % (sST[2], sST[2], sST[2], sT3))
    w.e("s_lshl_b32 s%d, s3, 12\ns_add_u32 s%d, s%d, s%d\ns_add_u32 s%d, s%d, %d" % (sST[3], sST[3], sST[3], sT2, sST[3], sST[3], 112 * 1024))
    w.e("s_branch L_setup_done\nL_setup_kv:")
    w.e("s_lshl_b32 s%d, s5, 1\ns_add_u32 s%d, s4, 1024\ns_add_u32 s%d, s4, 2048\ns_mov_b32 s%d, 0" % (sCOL[0], sCOL[1], sCOL[2], sCOL[3]))
    w.e("s_lshl_b32 s%d, s5, 6\ns_add_u32 s%d, s%d, s%d" % (sST[2], sST[2], sST[2], sT2))
    w.e("s_mov_b32 s%d, 0\ns_mov_b32 s%d, 0\ns_mov_b32 s%d, 0" % (sST[0], sST[1], sST[3]))
    w.e("s_mov_b32 s7, s5\ns_mov_b32 s6, s5")
    w.e("L_setup_done:")
    w.e("v_add_u32 v16, s6, v0\nv_add_u32 v17, s7, v%d\nv_cmp_gt_u32 vcc, 128, v0\nv_cndmask_b32 v16, v17, v16, vcc\nv_lshlrev_b32 v%d, 1, v16" % (vLANE, P + 1))
    w.e("s_waitcnt lgkmcnt(0)")
    w.e("s_cmp_ge_u32 s2, 8\ns_cbranch_scc1 L_noinit")
    w.e("v_mov_b32 v20, 0\nv_mov_b32 v21, 0\nv_mov_b32 v22, 0\nv_mov_b32 v23, 0\nv_lshlrev_b32 v17, 4, v0")
    w.e("s_lshl_b32 s4, s2, 13\ns_add_u32 s4, s4, %d" % KVO)
    w.e("buffer_store_dwordx4 v[20:23], v17, %s, s4 offen sc1" % srd(SWS))
    w.e("L_noinit:")
    w.e("s_bitcmp1_b32 s%d, 0\ns_cbranch_scc1 L_kv" % sG)
    w.e("s_cmp_ge_u32 s%d, 4\ns_cbranch_scc1 L_q1\ns_branch L_q0" % sW)
    w.e("L_kv:\ns_cmp_ge_u32 s%d, 4\ns_cbranch_scc1 L_kv1\ns_branch L_kv0" % sW)
    w.e("L_exit:\ns_endpgm")
    return w


HEADER = """; Fused LayerNorm + linear attention + GELU MLP gate, one persistent launch (generated by gen/gen.py).
; @launch grid=(256,1,1) block=(512,1,1) lds=163840
.amdgcn_target "amdgcn-amd-amdhsa--gfx950"
.text
.globl {k}
.p2align 8
.type {k},@function
{k}:
"""
FOOTER = """
.section .rodata,"a"
.p2align 6
.amdhsa_kernel {k}
  .amdhsa_next_free_vgpr 256
  .amdhsa_next_free_sgpr 102
  .amdhsa_accum_offset 256
  .amdhsa_group_segment_fixed_size 0
  .amdhsa_kernarg_size 88
  .amdhsa_user_sgpr_count 2
  .amdhsa_user_sgpr_kernarg_segment_ptr 1
  .amdhsa_system_sgpr_workgroup_id_x 1
  .amdhsa_float_denorm_mode_32 3
.end_amdhsa_kernel
"""


def build():
    out = [HEADER.format(k=KNAME)]
    out += pad_hazards(prologue().lines)
    qs = []
    for name, kv, ch in (("L_q0", False, 0), ("L_q1", False, 1), ("L_kv0", True, 0), ("L_kv1", True, 1)):
        out.append(".p2align 6\n" + name + ":")
        w = phase1(kv, ch)
        qs.append(w.vmq[0])
        out += pad_hazards(w.lines)
    out.append(".p2align 6")
    out += pad_hazards(phase2(qs).lines)
    out.append(FOOTER.format(k=KNAME))
    return "\n".join(("    " + l if not (l.endswith(":") or l.startswith(".") or l.startswith(";") or "\n" in l) else l) for l in out)


if __name__ == "__main__":
    Opt.stamps = "--stamps" in sys.argv
    Opt.cyc = "--cyc" in sys.argv
    Opt.p2stamps = "--p2" in sys.argv
    for a in sys.argv[1:]:
        if a.startswith("--p1="):
            Opt.p1stamps = [int(x) for x in a[5:].split(",")]
    dst = [a for a in sys.argv[1:] if not a.startswith("--")]
    txt = build()
    if dst:
        open(dst[0], "w").write(txt)
    else:
        print(txt)
```

```python
import sys, struct, math
from asmlib import Stream, pad_hazards

KNAME = "recurrent_scan__linear_attn_block__dense_activation_gelu__prompt_kernel"


def f32(x):
    return "0x%08x" % struct.unpack("<I", struct.pack("<f", x))[0]


LOG2E = 1.4426950408889634
GC0 = -2.0 * LOG2E * math.sqrt(2.0 / math.pi)
GC1 = GC0 * 0.044715

TOKBLK = 144 * 1024
KVO = 0xA00000
WS_BYTES = KVO + 0x10000
FLAG_OFF = 1152

UNIT = 8192
MISC = 18 * UNIT
ST, RST, CSP = 0, 2048, 8192
PY, PS = 32768, 98304

SX, SWQ, SW1, SW2, SWS, SDBG, SB = 8, 12, 16, 20, 28, 36, 40
SWO, SOUT = SWQ, SW1
sWOP, sOUTP = 24, 26
sK8 = [3, 4, 5, 6, 7, 32, 33, 34]
sHC = 35
sFB, sB2P, sLO = 44, 46, 48
sW, sWL, sG, sXB = 50, 51, 52, 53
sCOL = [54, 55, 56, 57]
sST = [58, 59, 60, 61]
sTMP, sONE, sL2E, sEPS = 62, 63, 64, 65
sTP, sCB, sFLG, sSPIN = 66, 67, 68, 69
sAB, sKVA, sT2, sT3, sPQ, sRB = 70, 71, 72, 73, 74, 75
sPD = 76
sTS = 92
NSTAMP = 5
KVCNT = 128


def srd(r):
    return "s[%d:%d]" % (r, r + 3)


def vr(a, n=4):
    return "v[%d:%d]" % (a, a + n - 1)


vLANE, vXD, vAD, vBD, vHD, vW2D, vSTO = 1, 2, 3, 4, 5, 6, 7
vW = [8, 9, 10, 11]
vX = [12, 13, 14, 15]
WF = 16
ACC = {"A": 32, "B": 48, "C": 64}
CSA, SEL = 80, 84
CB = [88, 92]
XAUG, WAUG = 96, 100
OUTR = [104, 108]
T, P = 112, 116
vR, vSD, vK0, vK1, vS0, vS1, vMS2, vTMP = 120, 121, 122, 123, 124, 125, 126, 127
vBI = [92, 93, 94]
vCSW = 2
XR = 128
AR = 128
vA = 3
EPSB = 0x3586

PF = 2
POLLW, PUBW = 0, 1
C_FMA, C_TR, C_VM = 1.5, 2.0, 3.0


class Opt:
    stamps = None
    cyc = False
    touch = True
    dlA = 58
    k1bar = 16
    tmode = 'all'
    pollstep = 1
    tsteps = [36, 40, 44, 64, 72]


class Fill:
    def __init__(self):
        self.q = []
        self.credit = 0.0

    def add(self, fn, cost=1.0):
        self.q.append((fn, cost))

    def ins(self, w, s, cost=None):
        if cost is None:
            op = s.split()[0]
            cost = C_FMA if op.startswith("v_fma") else C_TR if op in ("v_exp_f32", "v_rcp_f32", "v_rsq_f32") else 0.0 if op.startswith("s_") else 1.0
        self.add(lambda: w.e(s), cost)

    def total(self):
        return sum(c for _, c in self.q)

    def pull(self, budget):
        self.credit = min(self.credit, 0.0) + budget
        while self.q and (self.credit > 0.25 or self.q[0][1] == 0):
            fn, cost = self.q.pop(0)
            fn()
            self.credit -= cost

    def drain(self):
        self.pull(1e9)
        self.credit = 0.0


def dma(w, srd_r, voff, sbase, imm, unit, tag):
    w.e("s_add_u32 m0, s%d, %d" % (sWL, unit * UNIT))
    if sbase is None:
        w.e("s_mov_b32 s%d, %d" % (sTMP, imm))
    else:
        w.e("s_add_u32 s%d, s%d, %d" % (sTMP, sbase, imm))
    w.vmem("buffer_load_dwordx4 v%d, %s, s%d offen lds" % (voff, srd(srd_r), sTMP), tag)


def dma_w(w, srd_r, voff, col, c, pitch, unit, tag):
    w.e("s_add_u32 m0, s%d, %d" % (sWL, unit * UNIT))
    w.e("s_mul_i32 s%d, s%d, %d\ns_add_u32 s%d, s%d, s%d" % (sTMP, sK8[c], 8 * pitch, sTMP, sTMP, col))
    w.vmem("buffer_load_dwordx4 v%d, %s, s%d offen lds" % (voff, srd(srd_r), sTMP), tag)


def dma_x(w, c, hx, unit, tag):
    w.e("s_add_u32 m0, s%d, %d" % (sWL, unit * UNIT))
    w.e("s_lshl4_add_u32 s%d, s%d, s%d" % (sTMP, sK8[c], sXB if hx == 0 else sSPIN))
    w.vmem("buffer_load_dwordx4 v%d, %s, s%d offen lds" % (vXD, srd(SX), sTMP), tag)


def dma_hc(w, c, h, unit, tag):
    w.e("s_add_u32 m0, s%d, %d" % (sWL, unit * UNIT))
    w.e("s_mul_i32 s%d, s%d, %d\ns_add_u32 s%d, s%d, s%d" % (sTMP, sK8[4 * c + 2 * w.ch + h], 8 * 3584, sTMP, sTMP, sCOL[2]))
    w.vmem("buffer_load_dwordx4 v%d, %s, s%d offen lds" % (vHD, srd(SW1), sTMP), tag)


sU2 = {0: sRB, 1: sONE, 2: sCOL[0], 3: sXB, 4: sK8[1], 5: sK8[2], 7: sK8[3], 8: sK8[4]}


def p2_order(w, ms, tab):
    w.e("s_lshr_b32 s%d, s2, 6\ns_add_u32 s%d, s%d, s%d\ns_and_b32 s%d, s%d, 3" % (tab, tab, tab, sCB, tab, tab))
    if 4 in ms:
        w.e("s_bitcmp1_b32 s%d, 0" % tab)
        w.e("s_cselect_b32 s%d, 5, 2\ns_cselect_b32 s%d, 2, 5\ns_cselect_b32 s%d, 1, 0\ns_cselect_b32 s%d, 0, 1" % (sU2[4], sU2[5], sU2[7], sU2[8]))
    w.e("s_lshl_b32 s%d, s%d, 2\ns_lshr_b32 s%d, 0x60416041, s%d" % (tab, tab, tab, tab))
    for m in ms:
        if m < 4:
            w.e("s_bfe_u32 s%d, s%d, 0x%x" % (sU2[m], tab, 0x40000 | (4 * m)))
        w.e("s_lshl_b32 s%d, s%d, 12" % (sU2[m], sU2[m]))


def w2_dma(w, m, kq):
    w.e("s_add_u32 m0, s%d, %d" % (sWL, (4 * (m % 4) + kq) * UNIT))
    if m == 6:
        w.e("s_mov_b32 s%d, %d" % (sTMP, (448 * kq + 192) * 1024))
    else:
        w.e("s_lshl4_add_u32 s%d, s%d, %d" % (sTMP, sU2[m], (448 if m < 7 else 128) * kq * 1024))
    w.vmem("buffer_load_dwordx4 v%d, %s, s%d offen lds" % (vW2D, srd(SW2 if m < 7 else SWO), sTMP), "W2_%d" % m)


def a_load(w, m, s):
    r = AR + 16 * (m % 4) + 4 * s
    if m == 6:
        w.e("s_add_u32 s%d, s%d, %d" % (sTMP, sAB, 3 * 4096))
    else:
        w.e("s_add_u32 s%d, s%d, s%d" % (sTMP, sAB if m < 7 else sPQ, sU2[m]))
    w.vmem("buffer_load_dwordx4 %s, v%d, %s, s%d offen offset:%d sc1" % (vr(r), vA, srd(SWS), sTMP, 1024 * s), "A%d_%d" % (m, s))


def stamp(w, name):
    if Opt.stamps and name in Opt.stamps:
        i = Opt.stamps.index(name)
        w.e("%s s[%d:%d]" % ("s_memtime" if Opt.cyc else "s_memrealtime", sTS + 2 * i, sTS + 2 * i + 1))


_lbl = [0]


def label(p):
    _lbl[0] += 1
    return "L_%s_%d" % (p, _lbl[0])


def poll_load(w, kvall):
    w.e("s_load_dwordx8 s[%d:%d], s[%d:%d], 0 glc" % (sPD, sPD + 7, sFB, sFB + 1))
    if kvall:
        for k in range(4):
            w.e("s_load_dword s%d, s[%d:%d], %d glc" % (sPD + 8 + k, sFB, sFB + 1, KVCNT + 128 * k))
    elif kvall is not None:
        w.e("s_load_dwordx8 s[%d:%d], s[%d:%d], 32 glc" % (sPD + 8, sPD + 15, sFB, sFB + 1))


def poll_issue(w, kvall=False):
    l = label("pi")
    w.e("s_cmp_lg_u32 s%d, %d\ns_cbranch_scc1 %s" % (sW, POLLW, l))
    poll_load(w, kvall)
    w.e(l + ":")


def poll_check(w, tq, tk, kvall=False):
    l, lp = label("pc"), label("pl")
    w.e("s_cmp_lg_u32 s%d, %d\ns_cbranch_scc1 %s" % (sW, POLLW, l))
    w.e("s_mov_b32 s%d, 0" % sSPIN)
    w.e(lp + ":")
    w.e("s_waitcnt lgkmcnt(0)")
    for k in (4, 2, 1):
        for j in range(k):
            w.e("s_min_u32 s%d, s%d, s%d" % (sPD + j, sPD + j, sPD + j + k))
    if kvall:
        w.e("s_add_u32 s%d, s%d, s%d\ns_add_u32 s%d, s%d, s%d\ns_add_u32 s%d, s%d, s%d" % (sPD + 8, sPD + 8, sPD + 9, sPD + 10, sPD + 10, sPD + 11, sPD + 8, sPD + 8, sPD + 10))
        tk = 128
    elif tk:
        for k in (4, 2, 1):
            for j in range(k):
                w.e("s_min_u32 s%d, s%d, s%d" % (sPD + 8 + j, sPD + 8 + j, sPD + 8 + j + k))
    if tk:
        w.e("s_cmp_ge_u32 s%d, %d\ns_cselect_b32 s%d, s%d, 0" % (sPD + 8, tk, sPD, sPD))
    w.e("s_cmp_ge_u32 s%d, %d\ns_cbranch_scc1 %s" % (sPD, tq, l))
    w.e("s_add_u32 s%d, s%d, 1\ns_cmp_ge_u32 s%d, 0x40000\ns_cbranch_scc1 %s" % (sSPIN, sSPIN, sSPIN, l))
    poll_load(w, kvall if (kvall or tk) else None)
    w.e("s_branch %s" % lp)
    w.e(l + ":")


def publish(w, val, vtmp):
    l = label("pub")
    w.e("s_cmp_lg_u32 s%d, %d\ns_cbranch_scc1 %s" % (sW, PUBW, l))
    w.e("v_mov_b32 v%d, %d" % (vtmp, val))
    w.e("s_mov_b64 exec, 1")
    w.e("buffer_store_dword v%d, off, %s, s%d sc1" % (vtmp, srd(SWS), sFLG))
    w.e("s_mov_b64 exec, -1")
    w.e(l + ":")


def epi_group(w, F, kind, a, o, c=None):
    R = range(4)
    if kind == "gelu":
        for j in R: F.ins(w, "v_mul_f32 v%d, v%d, v%d" % (P + j, a + j, a + j))
        for j in R: F.ins(w, "v_fma_f32 v%d, v%d, v%d, v%d" % (P + j, P + j, vK1, vK0))
        for j in R: F.ins(w, "v_mul_f32 v%d, v%d, v%d" % (P + j, a + j, P + j))
        for j in R: F.ins(w, "v_exp_f32 v%d, v%d" % (P + j, P + j))
        for j in R: F.ins(w, "v_fma_f32 v%d, v%d, v%d, v%d" % (P + j, P + j, vSD, vSD))
        for j in R: F.ins(w, "v_rcp_f32 v%d, v%d" % (P + j, P + j))
        for j in R: F.ins(w, "v_mul_f32 v%d, v%d, v%d" % (T + j, a + j, P + j))
    elif kind == "phi":
        for j in R: F.ins(w, "v_mul_f32 v%d, v%d, v%d" % (P + j, a + j, 95))
        for j in R: F.ins(w, "v_max_f32 v%d, v%d, v%d" % (T + j, a + j, 127))
        for j in R: F.ins(w, "v_exp_f32 v%d, v%d clamp" % (P + j, P + j))
        for j in R: F.ins(w, "v_fma_f32 v%d, v%d, v%d, v%d" % (T + j, T + j, vR, P + j))
    elif kind == "k":
        for j in R: F.ins(w, "v_mul_f32 v%d, v%d, v%d" % (T + j, a + j, c + j))
        for j in R: F.ins(w, "v_mul_f32 v%d, s%d, v%d" % (P + j, sL2E, T + j))
        for j in R: F.ins(w, "v_max_f32 v%d, s%d, v%d" % (T + j, sEPS, T + j))
        for j in R: F.ins(w, "v_exp_f32 v%d, v%d clamp" % (P + j, P + j))
        for j in R: F.ins(w, "v_add_f32 v%d, v%d, v%d" % (T + j, T + j, P + j))
    elif kind == "v":
        for j in R: F.ins(w, "v_mul_f32 v%d, v%d, v%d" % (T + j, a + j, c + j))
    F.ins(w, "v_cvt_pk_bf16_f32 v%d, v%d, v%d" % (o, T, T + 1))
    F.ins(w, "v_cvt_pk_bf16_f32 v%d, v%d, v%d" % (o + 1, T + 2, T + 3))


def aug_step(w, F, acc, tiles, bias, swapped, gap=True, split=False):
    a, b = CB[0], P
    o = CSP // 256
    for n, t in enumerate(tiles):
        r, va = (b, T) if n else (a, vMS2)
        if n: F.ins(w, "v_xor_b32 v%d, 64, v%d" % (T, vMS2), 0.0)
        F.add(lambda r=r, t=t, va=va: w.lds("ds_read2st64_b32 %s, v%d offset0:%d offset1:%d" % (vr(r, 2), va, o + t, o + 8 + t), "cs"), 0.0)
        F.add(lambda r=r, t=t, va=va: w.lds("ds_read2st64_b32 %s, v%d offset0:%d offset1:%d" % (vr(r + 2, 2), va, o + 16 + t, o + 24 + t), "cs"), 0.0)
    if isinstance(bias, str):
        F.ins(w, "v_mov_b32 v%d, %s" % (WAUG + 2, bias))
        F.ins(w, "v_lshlrev_b32 v%d, 16, %s" % (T + 1, bias))
    else:
        F.ins(w, "v_mov_b32 v%d, 0x%x" % (WAUG + 2, bias))
        F.ins(w, "v_mov_b32 v%d, 0x%x" % (T + 1, bias << 16))
    if gap: F.add(lambda: None, 3.0)
    if split: F.add(lambda: None, 1e3)
    F.add(lambda: w.wait(lg="cs"), 0.01)
    if len(tiles) > 1:
        for j in range(4): F.ins(w, "v_add_f32 v%d, v%d, v%d" % (a + j, a + j, b + j))
    F.ins(w, "v_add_f32 v%d, v%d, v%d" % (a, a, a + 1))
    F.ins(w, "v_add_f32 v%d, v%d, v%d" % (a + 2, a + 2, a + 3))
    F.ins(w, "v_add_f32 v%d, v%d, v%d" % (a, a, a + 2))
    F.ins(w, "v_and_b32 v%d, 0xffff0000, v%d" % (T, a))
    F.ins(w, "v_sub_f32 v%d, v%d, v%d" % (a, a, T))
    F.ins(w, "v_cvt_pk_bf16_f32 v%d, v%d, v%d" % (WAUG + 1, T, T + 1))
    F.ins(w, "v_cvt_pk_bf16_f32 v%d, v%d, v%d" % (WAUG, T, a))
    if gap: F.add(lambda: None, 1.0)
    x, y = (WAUG, XAUG) if swapped else (XAUG, WAUG)
    F.ins(w, "v_mfma_f32_32x32x16_bf16 %s, %s, %s, %s" % (vr(acc, 16), vr(x), vr(y), vr(acc, 16)), 6.0)
    if gap: F.add(lambda: None, 5.0)


def epi_swapped(w, F, kind, acc, groups, sst, tag):
    for i in groups:
        ob = OUTR[(i >> 1) & 1]
        epi_group(w, F, kind, acc + 4 * i, ob + 2 * (i & 1))
        if i & 1:
            F.add(lambda ob=ob, i=i: w.vmem("buffer_store_dwordx4 %s, v%d, %s, s%d offen offset:%d sc1"
                                             % (vr(ob), vSTO, srd(SWS), sst, 1024 * (i >> 1)), tag), C_VM)


def epi_tokens(w, F, kind, acc, dst, after=None):
    def rd(i):
        F.add(lambda: w.lds("ds_read_b128 %s, v%d offset:%d" % (vr(CB[(i + 1) & 1]), vTMP, RST + 32 * i), "g%d" % i), 0.0)
    rd(0)
    for i in range(4):
        if i < 3: rd(i + 1)
        F.add(lambda i=i: w.wait(lg="g%d" % i), 0.01)
        epi_group(w, F, kind, acc + 4 * i, dst + 2 * i, c=CB[(i + 1) & 1])
        if after: after(i)


def stats_finish(w, F, kv):
    a, b = T, P
    F.add(lambda: w.lds("ds_read2_b32 %s, v%d offset0:0 offset1:32" % (vr(a, 2), vS0), "st"), 0.0)
    F.add(lambda: w.lds("ds_read2_b32 %s, v%d offset0:0 offset1:32" % (vr(b, 2), vS1), "st"), 0.0)
    F.ins(w, "v_mov_b32 v%d, 0" % (XAUG + 3))
    F.ins(w, "v_mov_b32 v%d, 0" % (WAUG + 3))
    F.ins(w, "v_cmp_gt_u32 vcc, 32, v%d" % vLANE)
    F.add(lambda: None, 2.0)
    F.add(lambda: w.wait(lg="st"), 0.01)
    L = ["v_add_f32 v%d, v%d, v%d" % (a, a, a + 1), "v_add_f32 v%d, v%d, v%d" % (b, b, b + 1),
         "v_mul_f32 v%d, %s, v%d" % (a, f32(-1.0 / 512), a),
         "v_mul_f32 v%d, %s, v%d" % (b, f32(1.0 / 512), b),
         "v_fma_f32 v%d, -v%d, v%d, v%d" % (b, a, a, b),
         "v_and_b32 v%d, 0xffff0000, v%d" % (a + 1, a),
         "v_max_f32 v%d, 0, v%d" % (b, b), "v_sub_f32 v%d, v%d, v%d" % (a, a, a + 1),
         "v_add_f32 v%d, %s, v%d" % (b, f32(1e-5), b),
         "v_cvt_pk_bf16_f32 v%d, v%d, v%d" % (XAUG, a + 1, a + 1),
         "v_rsq_f32 v%d, v%d" % (vR, b), "v_sqrt_f32 v%d, v%d" % (vSD, b),
         "v_cndmask_b32 v%d, 0, v%d, vcc" % (XAUG, XAUG),
         "v_mul_f32 v%d, v%d, v%d" % (b, vR, vR), "v_and_b32 v%d, 0xffff0000, v%d" % (a + 2, vSD),
         "v_mul_f32 v%d, %s, v%d" % (vK0, f32(GC0), vR), "v_sub_f32 v%d, v%d, v%d" % (a + 3, vSD, a + 2),
         "v_cvt_pk_bf16_f32 v%d, v%d, v%d" % (XAUG + 1, a, a + 2), "v_mul_f32 v%d, v%d, v%d" % (vK1, vK0, b),
         "v_cvt_pk_bf16_f32 v%d, v%d, v%d" % (XAUG + 2, a + 3, XAUG + 3), "v_mul_f32 v%d, %s, v%d" % (vK1, f32(0.044715), vK1),
         "v_cndmask_b32 v%d, 0, v%d, vcc" % (XAUG + 1, XAUG + 1), "v_cndmask_b32 v%d, 0, v%d, vcc" % (XAUG + 2, XAUG + 2)]
    for s in L: F.ins(w, s)
    if kv:
        F.ins(w, "s_and_b32 s%d, s%d, 3" % (sT2, sW))
        F.ins(w, "s_lshl_b32 s%d, s%d, 7" % (sT2, sT2))
        F.ins(w, "v_add_u32 v%d, s%d, v%d" % (a, sT2, vMS2))
        F.ins(w, "v_add_u32 v%d, s%d, v%d" % (vTMP, sT2, vTMP))
        F.add(lambda: w.lds("ds_write_b32 v%d, v%d offset:%d" % (a, vR, RST), "rs"), 0.0)


def late_setup(w, F, kv):
    L = []
    for r, n in ((SWQ, 1572864), (SWS, WS_BYTES + (8192 if Opt.stamps else 0)), (SB, 3584), (SW2, 1835008), (SDBG, 256)):
        L += ["s_mov_b32 s%d, %d" % (r + 2, n), "s_mov_b32 s%d, 0x20000" % (r + 3)]
    for c in range(2, 8):
        L += ["s_add_u32 s%d, s%d, %d" % (sK8[c], sK8[0], 8 * c), "s_and_b32 s%d, s%d, 63" % (sK8[c], sK8[c])]
    L += ["s_movk_i32 s76, 3072", "v_mad_u32_u24 v%d, v16, s76, v18" % vAD,
          "v_lshl_add_u32 v%d, v16, 10, v18" % vW2D, "s_lshl_b32 s76, s%d, 7" % sCB, "v_add_u32 v%d, s76, v%d" % (vW2D, vW2D),
          "v_and_b32 v16, 31, v0", "v_bfe_u32 v17, v0, 8, 1", "v_lshl_add_u32 v16, v17, 5, v16", "v_lshlrev_b32 v%d, 1, v16" % P,
          "s_mul_i32 s%d, s%d, %d" % (sT3, sRB, 4 * TOKBLK), "s_add_u32 s%d, s%d, %d" % (sT2, sT3, 2048 * w.ch),
          "s_lshr_b32 s76, s%d, 1" % sG, "s_lshl_b32 s77, s76, 7", "s_lshl_b32 s78, s%d, 5" % sCOL[0], "s_add_u32 s78, s78, s%d" % sT2]
    if kv:
        L += ["s_add_u32 s%d, s77, 1024" % sCOL[1], "s_add_u32 s%d, s77, 2048" % sCOL[2], "s_mov_b32 s%d, s78" % sST[2]]
    else:
        L += ["s_add_u32 s%d, s%d, 128" % (sCOL[1], sCOL[0]), "s_lshl_b32 s%d, s%d, 1" % (sCOL[2], sHC), "s_mov_b32 s%d, s77" % sCOL[3],
              "s_mov_b32 s%d, s78" % sST[0], "s_add_u32 s%d, s78, 4096" % sST[1],
              "s_lshl_b32 s%d, s%d, 6" % (sST[2], sHC), "s_add_u32 s%d, s%d, s%d" % (sST[2], sST[2], sT3), "s_add_u32 s%d, s%d, %d" % (sST[2], sST[2], 1024 * w.ch),
              "s_lshl_b32 s%d, s76, 12" % sST[3], "s_add_u32 s%d, s%d, s%d" % (sST[3], sST[3], sT2), "s_add_u32 s%d, s%d, %d" % (sST[3], sST[3], 112 * 1024),
              "v_bfe_u32 v16, v0, 2, 6", "v_and_b32 v17, 3, v0", "v_lshlrev_b32 v17, 4, v17", "s_movk_i32 s76, 3584", "v_mad_u32_u24 v%d, v16, s76, v17" % vHD]
    L += ["s_and_b32 s77, s%d, 3" % sW, "s_lshr_b32 s78, s%d, 2" % sW]
    L += ["v_and_b32 v17, 31, v%d" % vLANE, "v_bfe_u32 v18, v%d, 1, 3" % vLANE, "v_lshrrev_b32 v19, 5, v%d" % vLANE, "v_xor_b32 v18, v18, v19",
          "v_lshlrev_b32 v17, 7, v17", "v_lshl_add_u32 v17, v18, 4, v17", "s_lshl_b32 s79, s77, 12", "v_add_u32 v17, s79, v17"]
    L += ["v_lshlrev_b32 v16, 10, v19", "v_bfe_u32 v18, v%d, 2, 2" % vLANE, "v_lshl_add_u32 v16, v18, 7, v16",
          "v_bfe_u32 v18, v%d, 3, 1" % vLANE, "v_xor_b32 v18, s78, v18", "v_lshl_add_u32 v16, v18, 6, v16",
          "v_bfe_u32 v18, v%d, 4, 1" % vLANE, "v_lshl_add_u32 v16, v18, 5, v16",
          "v_and_b32 v18, 3, v%d" % vLANE, "v_lshl_add_u32 v16, v18, 3, v16"]
    for p in range(4):
        L += ["s_xor_b32 s79, s77, %d" % p, "s_lshl_b32 s82, s79, 11", "s_lshl_b32 s79, s79, 5",
              "v_add_u32 v%d, s82, v16" % vW[p], "v_xor_b32 v%d, s79, v17" % vX[p]]
    L += ["s_mov_b32 s%d, 0x3f803f80" % sONE, "s_mov_b32 s%d, %s" % (sL2E, f32(LOG2E)), "s_mov_b32 s%d, %s" % (sEPS, f32(1e-6)),
          "s_mov_b32 s%d, 0x0000ffff" % sLO, "s_mov_b32 s%d, 0x0000ffff" % (sLO + 1)]
    L += ["v_and_b32 v17, 31, v%d" % vLANE, "v_cmp_eq_u32 vcc, 0, v17", "v_cmp_eq_u32 s[80:81], 20, v17", "v_mov_b32 v18, s%d" % sONE, "s_or_b64 vcc, vcc, s[80:81]",
          "v_cndmask_b32 v%d, 0, v18, vcc" % SEL, "v_cndmask_b32 v%d, 0, v18, vcc" % (SEL + 1), "v_cndmask_b32 v%d, 0, v18, vcc" % (SEL + 2), "v_cndmask_b32 v%d, 0, v18, vcc" % (SEL + 3)]
    L += ["v_mov_b32 v%d, 0" % vS0, "v_mov_b32 v%d, 0" % vS1]
    L += ["v_lshlrev_b32 v17, 2, v17", "v_add_u32 v%d, %d, v17" % (vMS2, MISC),
          "v_lshlrev_b32 v%d, 4, v19" % vTMP, "v_add_u32 v%d, %d, v%d" % (vTMP, MISC, vTMP),
          "s_mul_i32 s79, s77, %d" % TOKBLK, "v_lshlrev_b32 v%d, 4, v%d" % (vSTO, vLANE), "v_add_u32 v%d, s79, v%d" % (vSTO, vSTO)]
    L += ["s_lshr_b32 s79, s%d, 1" % sTP, "s_lshl_b32 s79, s79, 11", "s_add_u32 s79, s79, %d" % (KVO + FLAG_OFF),
          "s_add_u32 s%d, s%d, s79\ns_addc_u32 s%d, s%d, 0" % (sFB, SWS, sFB + 1, SWS + 1)]
    L += ["s_lshr_b32 s76, s%d, 1" % sG, "s_lshl_b32 s%d, s76, 13" % sKVA, "s_add_u32 s%d, s%d, %d" % (sKVA, sKVA, KVO),
          "s_lshl_b32 s%d, s%d, 11" % (sFLG, sRB), "s_and_b32 s79, s%d, 1" % sG, "s_lshl_b32 s79, s79, 3", "s_add_u32 s79, s79, s76", "s_lshl_b32 s79, s79, 2", "s_add_u32 s%d, s%d, s79" % (sFLG, sFLG), "s_add_u32 s%d, s%d, %d" % (sFLG, sFLG, KVO + FLAG_OFF),
          "s_lshl_b32 s79, s%d, 1" % sTP, "s_add_u32 s79, s79, s78", "s_mul_i32 s79, s79, %d" % TOKBLK,
          "s_mul_i32 s%d, s77, %d" % (sAB, 28 * 1024), "s_add_u32 s%d, s%d, s79" % (sAB, sAB),
          "s_lshl_b32 s%d, s77, 13" % sPQ, "s_add_u32 s%d, s%d, s79" % (sPQ, sPQ), "s_add_u32 s%d, s%d, %d" % (sPQ, sPQ, 112 * 1024)]
    for s in L:
        F.add(lambda s=s: w.e(s), 1.0)


vWR = 8
vKL, vEP = 95, 127
XCH = 14 * UNIT


def p2_read_addr(w, t):
    w.e("v_lshrrev_b32 v%d, 5, v%d\nv_lshlrev_b32 v%d, 9, v%d" % (vWR, vLANE, vWR, vWR))
    for sh, wd, k in ((2, 2, 7), (3, 1, 6), (4, 1, 5), (0, 2, 3)):
        w.e("v_bfe_u32 v%d, v%d, %d, %d\nv_lshl_add_u32 v%d, v%d, %d, v%d" % (t, vLANE, sh, wd, vWR, t, k, vWR))
    w.e("s_and_b32 s%d, s%d, 3\ns_lshl_b32 s%d, s%d, 13\nv_add_u32 v%d, s%d, v%d" % (sT2, sW, sT2, sT2, vWR, sT2, vWR))
    w.e("v_xor_b32 v%d, 64, v%d\nv_add_u32 v%d, 0x10000, v%d" % (vWR + 1, vWR, vWR + 2, vWR))
    w.e("v_add_u32 v%d, 0x10000, v%d" % (vWR + 3, vWR + 1))


def phase1(kv, ch):
    w = Stream()
    w.ch = ch
    F = Fill()
    w.c("==== phase 1, %s, column half %d" % ("kv workgroup" if kv else "q workgroup", ch))
    req = []
    pitch = {SWQ: 3072, SW1: 3584}

    def wreq(name, srd_r, voff, col, row0, need, rel):
        req.append([name, lambda u: dma_w(w, srd_r, voff, col, row0 // 64, pitch[srd_r], u, name), need, rel])

    for c in range(8):
        if not kv:
            wreq("W0_%d" % c, SW1, vBD, sCOL[0], 64 * c, c, c + 2)
        for hx in range(2):
            req.append(["X%d_%d" % (c, hx), lambda u, c=c, hx=hx: dma_x(w, c, hx, u, "X%d_%d" % (c, hx)), c, c + 1])
        if kv:
            wreq("W0_%d" % c, SW1, vBD, sCOL[0], 64 * c, c, c + 2)
    if kv:
        passes = [("A", True, 4), ("B", False, 0), ("A", False, 2)]
        for c in range(8): wreq("W1_%d" % c, SWQ, vAD, sCOL[1], 64 * c, 8 + c // 2, 8 + c // 2 + 2)
        for c in range(8): wreq("W2p_%d" % c, SWQ, vAD, sCOL[2], 64 * c, 12 + c // 2, 12 + c // 2 + 2)
        req.append(["XCH0", None, 16, 99])
        req.append(["XCH1", None, 16, 99])
        nb = 16
    else:
        passes = [("A", True, 0), ("B", True, 2), ("C", True, 6), ("A", True, 4)]
        for c in range(8): wreq("W1_%d" % c, SW1, vBD, sCOL[1], 64 * c, 8 + c // 2, 8 + c // 2 + 2)
        req.append(["SKIP0", None, 99, None])
        req.append(["SKIP1", None, 99, None])
        for c in range(8): wreq("W2p_%d" % c, SWQ, vAD, sCOL[3], 64 * c, 12 + c // 2, 12 + c // 2 + 2)
        for c in range(2):
            for h in range(2):
                nm = "HC%d_%d" % (c, h)
                req.append([nm, lambda u, c=c, h=h, nm=nm: dma_hc(w, c, h, u, nm), 16 + c, 16 + c + 2])
        nb = 18
    n1 = len(req)
    start = (-n1) % 18
    for m in range(4):
        for kq in range(4):
            req.append(["W2_%d" % m, (lambda u, m=m, kq=kq: w2_dma(w, m, kq)) if 4 * m + kq < 14 else None, 99, 999])
    unit_of = {}
    issue_at = {}
    for n, r in enumerate(req):
        u = (start + n) % 18
        if n < n1:
            unit_of[r[0]] = u
        else:
            assert u == n - n1
        at_ = -1 if n < 18 else req[n - 18][3]
        if r[3] is None:
            r[3] = max(at_, 11)
        assert at_ < r[2] or (r[1] is None and at_ <= r[2]), (r[0], at_, r[2])
        issue_at.setdefault(at_, []).append((r, u))
    for c in range(8):
        assert unit_of["X%d_1" % c] == unit_of["X%d_0" % c] + 1
    if kv:
        assert unit_of["XCH1"] == unit_of["XCH0"] + 1
        xch = unit_of["XCH0"] * UNIT
    else:
        assert unit_of["HC0_0"] * UNIT == XCH

    VQ = []
    AQ = []

    def release(b):
        rs = [(r, u) for r, u in issue_at.pop(b, []) if r[1] is not None]
        rs.sort(key=lambda x: x[0][2])
        for r, u in rs:
            VQ.append(lambda r=r, u=u: r[1](u))

    def xreg(p):
        if kv:
            return XR + 4 * p
        c = p // 4
        return XR + (64 if c % 2 == ch else 0) + 16 * (c // 2) + 4 * (p % 4)

    steps = []
    for pi, (acc, swapped, tile0) in enumerate(passes):
        hc = (not kv) and pi == 3
        n = 16 if hc else 32
        for s in range(n):
            d = dict(pi=pi, s=s, n=n, acc=ACC[acc], swapped=swapped, tile=tile0 + (0 if hc else ch), hc=hc)
            if pi == 0:
                d["bar"] = s // 4
                d["first"] = s % 4 == 0
                d["units"] = ["W0_%d" % (s // 4), "X%d_0" % (s // 4), "X%d_1" % (s // 4)]
                d["off"] = unit_of["W0_%d" % (s // 4)] * UNIT
            elif hc:
                d["bar"] = 16 + s // 8
                d["first"] = s % 8 == 0
                d["units"] = ["HC%d_0" % (s // 8), "HC%d_1" % (s // 8)]
                d["off"] = unit_of["HC%d_%d" % (s // 8, ch)] * UNIT + ((s % 8) // 4) * 4096
            else:
                nm = {1: "W1_%d", 2: "W2p_%d"}[pi]
                b0 = {1: 8, 2: 12}[pi]
                d["bar"] = b0 + s // 8
                d["first"] = s % 8 == 0
                d["units"] = [nm % (2 * (s // 8)), nm % (2 * (s // 8) + 1)]
                d["off"] = unit_of[nm % (s // 4)] * UNIT
            d["x"] = xreg(8 * (s // 4) + 4 * ch + s % 4 if hc else s)
            steps.append(d)
    NS = len(steps)

    win = {"W": 0, "X": 0}

    def set_window(grp, regs, off):
        want = off // 57344 * 57344
        if want != win[grp]:
            for r in regs:
                w.e("v_add_u32 v%d, %d, v%d" % (r, want - win[grp], r) if want > win[grp]
                    else "v_subrev_u32 v%d, %d, v%d" % (r, win[grp] - want, r))
            win[grp] = want
        return off - want

    hooks_pre = {}
    hooks_post = {}
    pre_tags = {}

    def barrier(b, units):
        for fn in hooks_pre.get(b, []): fn()
        for u in units:
            assert any(u in q for q in w.vmq) or u in done_units or True
        w.wait(vm=tuple(units) + tuple(pre_tags.get(b, ())), lg=("xr", "csadd", "stw", "xchw", "xchr", "kvadd"))
        w.e("s_barrier")
        for fn in hooks_post.get(b, []): fn()
        release(b)

    done_units = set()
    issued = set()

    def reads(i):
        d = steps[i]
        if d["first"]:
            while any(u not in issued_names() for u in d["units"]):
                VQ.pop(0)()
            barrier(d["bar"], d["units"])
            if d["pi"] == 0:
                c = d["s"] // 4
                o = set_window("X", vX, unit_of["X%d_0" % c] * UNIT)
                for p in range(4):
                    w.lds("ds_read_b128 %s, v%d offset:%d" % (vr(xreg(4 * c + p)), vX[p], o), "xr")
        p = d["s"] % 4
        fr = WF + 4 * (i % 4)
        if d["hc"]:
            o = set_window("X", vX, d["off"])
            w.lds("ds_read_b64_tr_b16 %s, v%d offset:%d" % (vr(fr, 2), vX[p], o), "f%d" % i)
            w.lds("ds_read_b64_tr_b16 %s, v%d offset:%d" % (vr(fr + 2, 2), vX[p], o + 256), "f%d" % i)
        else:
            o = set_window("W", vW, d["off"])
            w.lds("ds_read_b64_tr_b16 %s, v%d offset:%d" % (vr(fr, 2), vW[p], o), "f%d" % i)
            w.lds("ds_read_b64_tr_b16 %s, v%d offset:%d" % (vr(fr + 2, 2), vW[p], o + 512), "f%d" % i)

    seen = set()
    _mark = w.mark

    seen_n = {}

    def mark2(tag):
        seen.add(tag)
        seen_n[tag] = seen_n.get(tag, 0) + 1
        _mark(tag)
    w.mark = mark2

    def issued_names():
        return seen

    def init_signal():
        l = label("ini")
        w.e("s_cmp_lg_u32 s%d, %d\ns_cbranch_scc1 %s\ns_cmp_ge_u32 s2, 8\ns_cbranch_scc1 %s" % (sW, PUBW, l, l))
        w.e("v_mov_b32 v%d, 1\ns_mov_b64 exec, 1" % T)
        w.e("buffer_atomic_add v%d, off, %s, 0" % (T, srd(SDBG)))
        w.e("s_mov_b64 exec, -1\n%s:" % l)

    def init_poll_issue():
        l = label("ip")
        w.e("s_cmp_lg_u32 s%d, %d\ns_cbranch_scc1 %s" % (sW, POLLW, l))
        w.e("buffer_load_dword v%d, off, %s, 0 sc1" % (OUTR[1], srd(SDBG)))
        w.e(l + ":")
        w.mark("IPMARK")

    def init_poll_check():
        n = w.pop_mark("IPMARK")
        l, lp = label("ic"), label("il")
        w.e("s_cmp_lg_u32 s%d, %d\ns_cbranch_scc1 %s" % (sW, POLLW, l))
        w.e("s_mov_b32 s%d, 0" % sSPIN)
        if n is not None:
            w.e("s_waitcnt vmcnt(%d)" % n)
        w.e(lp + ":")
        w.e("v_readfirstlane_b32 s%d, v%d" % (sT2, OUTR[1]))
        w.e("s_cmp_ge_u32 s%d, 8\ns_cbranch_scc1 %s" % (sT2, l))
        w.e("s_add_u32 s%d, s%d, 1\ns_cmp_ge_u32 s%d, 0x40000\ns_cbranch_scc1 %s" % (sSPIN, sSPIN, sSPIN, l))
        w.e("buffer_load_dword v%d, off, %s, 0 sc1" % (OUTR[1], srd(SDBG)))
        w.e("s_waitcnt vmcnt(0)\ns_branch %s" % lp)
        w.e(l + ":")

    hooks_post[0] = [lambda: stamp(w, "b0")]
    hooks_post[2] = [init_signal]
    hooks_post[6] = [init_poll_issue]
    hooks_pre[9] = [init_poll_check]

    release(-1)
    real = w.lines
    for _ in range(6): VQ.pop(0)()
    del real[1:]
    assert (unit_of["X0_0"], unit_of["W0_0"], unit_of["X1_0"] - unit_of["X0_0"], unit_of["W0_1"] - unit_of["W0_0"]) == ((12, 14, 3, 3) if kv else (9, 8, 3, 3))
    late_setup(w, F, kv)
    F.drain()
    l = label("noinit")
    w.e("s_cmp_ge_u32 s2, 8\ns_cbranch_scc1 %s" % l)
    w.e("v_mov_b32 v20, 0\nv_mov_b32 v21, 0\nv_mov_b32 v22, 0\nv_mov_b32 v23, 0\nv_lshlrev_b32 v17, 4, v0")
    w.e("s_lshl_b32 s76, s2, 13\ns_add_u32 s76, s76, %d" % KVO)
    w.e("buffer_store_dwordx4 v[20:23], v17, %s, s76 offen sc1" % srd(SWS))
    w.e(l + ":")
    VQ.pop(0)()
    stamp(w, "d18")
    if kv:
        w.vmem("buffer_load_ushort v%d, v%d, %s, s%d offen" % (vBI[0], P, srd(SB), sCOL[0]), "bias")
    else:
        w.vmem("buffer_load_ushort v%d, v%d, %s, s%d offen" % (vBI[0], P, srd(SB), sCOL[0]), "bias")
        w.vmem("buffer_load_ushort v%d, v%d, %s, s%d offen" % (vBI[1], P, srd(SB), sCOL[1]), "bias")
        if ch == 1:
            w.e("v_xor_b32 v%d, 96, v%d" % (P, P))
        w.vmem("buffer_load_ushort v%d, v%d, %s, s%d offen" % (vBI[2], P, srd(SB), sCOL[2]), "bias")
    for i in range(PF):
        reads(i)

    events = {}

    def at(i, fn):
        events.setdefault(i, []).append(fn)

    pstart = [min(i for i in range(NS) if steps[i]["pi"] == p) for p in range(len(passes))]
    plast = pstart[-1]
    deadline = {}

    def stats_chunk(c):
        def fn():
            w.wait(lg="xr")
            for k in range(16):
                x = xreg(4 * c) + k
                acc = vS0 if k % 2 == 0 else vS1
                if ch == 0:
                    w.e("v_dot2c_f32_bf16 v%d, s%d, v%d" % (acc, sONE, x))
                else:
                    w.e("v_dot2c_f32_bf16 v%d, v%d, v%d" % (acc, x, x))
        return fn

    for c in range(8):
        at(4 * c + 2 * ch if c < 7 else 27, stats_chunk(c))

    def stats_write():
        w.e("v_add_f32 v%d, v%d, v%d" % (vS0, vS0, vS1))
        w.e("v_lshlrev_b32 v%d, 2, v0\nv_add_u32 v%d, %d, v%d" % (vS1, vS1, MISC + ST, vS1))
        w.lds("ds_write_b32 v%d, v%d" % (vS1, vS0), "stw")
        w.e("v_and_b32 v%d, 0xdf, v0\nv_lshlrev_b32 v%d, 2, v%d" % (vS0, vS0, vS0))
        w.e("v_add_u32 v%d, %d, v%d\nv_add_u32 v%d, %d, v%d" % (vS1, MISC + ST + 1024, vS0, vS0, MISC + ST, vS0))

    at(28, stats_write)

    def cs_add(tile):
        return lambda: w.lds("ds_write_b32 v%d, v%d offset:%d" % (vCSW, CSA, tile * 256), "csadd")

    def csw_addr():
        assert "X7_1" in seen
        w.e("s_and_b32 s%d, s%d, 3\ns_lshl_b32 s%d, s%d, 11\ns_add_u32 s%d, s%d, %d" % (sT2, sW, sT2, sT2, sT2, sT2, MISC + CSP))
        w.e("v_lshlrev_b32 v%d, 2, v%d\nv_add_u32 v%d, s%d, v%d" % (vCSW, vLANE, vCSW, sT2, vCSW))

    at(21, csw_addr)
    for p in range(len(passes)):
        d0 = steps[pstart[p]]
        at(pstart[p] + d0["n"] - 3, cs_add(d0["tile"] + (ch if d0["hc"] else 0)))

    vTCH = vS0 if kv else vS1

    def dummy():
        if kv or "HC1_1" in seen:
            return vHD
        assert seen_n.get("stA", 0) < 2
        return 95

    def touch_addr():
        w.e("s_lshr_b32 s%d, s2, 7\ns_lshl3_add_u32 s%d, s%d, s%d\ns_lshl3_add_u32 s%d, s%d, s%d" % (sHC, sHC, sHC, sCB, sHC, sHC, sW))
        w.e("s_lshr_b32 s%d, s%d, 5\ns_mul_i32 s%d, s%d, 192\ns_add_u32 s%d, s%d, s%d\ns_lshl_b32 s%d, s%d, 11" % (sTMP, sHC, sTMP, sTMP, sTMP, sTMP, sHC, sTMP, sTMP))
        w.e("v_bfe_u32 v78, v%d, 4, 1\nv_mul_u32_u24 v78, %d, v78\nv_and_b32 v79, 15, v%d" % (vLANE, 192 * 1024, vLANE))
        w.e("v_lshl_add_u32 v78, v79, 7, v78\nv_add_u32 v%d, s%d, v78" % (vTCH, sTMP))

    def touch_w2(u):
        def fn():
            w.e("s_mov_b32 s%d, %d\ns_mov_b32 exec_hi, 0" % (sTMP, 65536 * u))
            w.vmem("buffer_load_dword v%d, v%d, %s, s%d offen sc1" % (dummy(), vTCH, srd(SW2), sTMP), "touch")
            w.e("s_mov_b32 exec_hi, -1")
        return fn

    def touch_wo():
        w.e("s_lshl_b32 s%d, s%d, 12\nv_lshlrev_b32 v%d, 7, v%d\nv_add_u32 v%d, s%d, v%d" % (sTMP, sHC, vTCH, vLANE, vTCH, sTMP, vTCH))
        w.e("s_mov_b32 exec_hi, 0")
        w.vmem("global_load_dword v%d, v%d, s[%d:%d] sc1" % (dummy(), vTCH, sWOP, sWOP + 1), "touch")
        w.e("s_mov_b32 exec_hi, -1")

    def touch_addr_all():
        w.e("s_lshr_b32 s%d, s2, 3\ns_lshl3_add_u32 s%d, s%d, s%d" % (sHC, sHC, sHC, sW))
        w.e("s_lshr_b32 s%d, s%d, 6\ns_mul_i32 s%d, s%d, 384\ns_add_u32 s%d, s%d, s%d\ns_lshl_b32 s%d, s%d, 10" % (sTMP, sHC, sTMP, sTMP, sTMP, sTMP, sHC, sTMP, sTMP))
        w.e("v_bfe_u32 v78, v%d, 4, 1\nv_mul_u32_u24 v78, %d, v78\nv_and_b32 v79, 15, v%d" % (vLANE, 192 * 1024, vLANE))
        w.e("v_lshl_add_u32 v78, v79, 6, v78\nv_add_u32 v%d, s%d, v78" % (vTCH, sTMP))

    def touch_wo_all():
        w.e("s_lshl_b32 s%d, s%d, 11\nv_lshlrev_b32 v%d, 6, v%d\nv_add_u32 v%d, s%d, v%d" % (sTMP, sHC, vTCH, vLANE, vTCH, sTMP, vTCH))
        w.e("s_mov_b32 exec_hi, 0")
        w.vmem("global_load_dword v%d, v%d, s[%d:%d] sc1" % (dummy(), vTCH, sWOP, sWOP + 1), "touch")
        w.e("s_mov_b32 exec_hi, -1")

    if Opt.touch and Opt.tmode == "kv" and kv:
        at(35, touch_addr)
        for st, u in zip(Opt.tsteps, (1, 0, 6, 2)):
            at(st + 2 * ch, touch_w2(u))
        at(Opt.tsteps[4] + 2 * ch, touch_wo)
    if Opt.touch and Opt.tmode == "all":
        at(35, touch_addr_all)
        for st, u in zip(Opt.tsteps, (1, 0, 6, 2)):
            at(st + 2 * ch, touch_w2(u))
        at(Opt.tsteps[4] + 2 * ch, touch_wo_all)

    def order_early():
        assert "W0_7" in seen and "X7_1" in seen and not any(t.startswith("W2_") for t in seen)
        p2_order(w, [0, 1, 2, 3], sT3)

    at(33, order_early)

    def early_loads():
        w.e("v_lshlrev_b32 v%d, 4, v%d" % (vA, vLANE))
        assert "W2p_7" in seen
        for m in range(4):
            for s in range(4):
                AQ.append(lambda m=m, s=s: a_load(w, m, s))

    if not kv:
        def q_p1():
            stats_finish(w, F, False)
            F.add(lambda: w.wait(vm="bias"), 0.0)
            aug_step(w, F, ACC["A"], [ch], "v%d" % vBI[0], True)
            epi_swapped(w, F, "gelu", ACC["A"], [0, 1, 2, 3], sST[0], "stA")

        def hc_addr():
            w.e("v_lshrrev_b32 v%d, 5, v%d\nv_lshlrev_b32 v%d, 9, v%d" % (T, vLANE, T, T))
            w.e("v_bfe_u32 v%d, v%d, 2, 2\nv_lshl_add_u32 v%d, v%d, 6, v%d" % (T + 1, vLANE, T, T + 1, T))
            w.e("v_bfe_u32 v%d, v%d, 4, 1\nv_lshl_add_u32 v%d, v%d, 5, v%d" % (T + 1, vLANE, T, T + 1, T))
            w.e("v_and_b32 v%d, 3, v%d\nv_lshl_add_u32 v%d, v%d, 3, v%d" % (T + 1, vLANE, T, T + 1, T))
            if ch == 1:
                w.e("v_xor_b32 v%d, 32, v%d" % (T, T))
            w.e("s_and_b32 s%d, s%d, 3" % (sT2, sW))
            for p in range(4):
                w.e("s_xor_b32 s%d, s%d, %d\ns_lshl_b32 s%d, s%d, 10" % (sT3, sT2, p, sT3, sT3))
                w.e("v_add_u32 v%d, s%d, v%d" % (vX[p], sT3, T))
            win["X"] = 0

        at(31, hc_addr)
        at(31, q_p1)
        deadline[31] = Opt.dlA

        def q_p2():
            aug_step(w, F, ACC["B"], [2 + ch], "v%d" % vBI[1], True)
            epi_swapped(w, F, "gelu", ACC["B"], [0, 1, 2, 3], sST[1], "stB")
            F.ins(w, "v_mul_f32 v%d, s%d, v%d" % (vKL, sL2E, vR))
            F.ins(w, "v_mul_f32 v%d, s%d, v%d" % (vEP, sEPS, vSD))

        def q_p3():
            aug_step(w, F, ACC["C"], [6 + ch], EPSB, True)
            epi_swapped(w, F, "phi", ACC["C"], [0, 1, 2, 3], sST[3], "stL")

        at(pstart[2] - 1, q_p2)
        deadline[pstart[2] - 1] = plast - 6
        at(plast - 1, q_p3)
        deadline[plast - 1] = NS - 3
        pre_tags[13] = ("stA",)
        hooks_post[13] = [lambda: publish(w, 1, vS0)]
        kb = Opt.k1bar
        at(pstart[2] + 8 * (kb - 12) - 9, lambda: poll_issue(w))
        hooks_pre[kb] = [lambda: poll_check(w, 1, 1)]
        hooks_post[kb] = [early_loads]
        pre_tags[17] = ("stB",)
        hooks_post[17] = [lambda: publish(w, 2, vS0)]
        at(plast - 1, lambda: p2_read_addr(w, vS1))

        def hc_aug():
            assert not F.q
            w.e("v_lshlrev_b32 v%d, 4, v0\nv_add_u32 v%d, %d, v%d\nv_xor_b32 v%d, 4096, v%d" % (vS0, vS0, XCH, vS0, vS1, vS0))
            aug_step(w, F, ACC["A"], [4 + ch, 5 - ch], "v%d" % vBI[2], True, gap=False, split=True)
            F.pull(10.0)

        hooks_post[nb] = [hc_aug]
    else:
        PK, VV, D1, vZ = 64, 72, 88, vS1

        def kv_p1():
            stats_finish(w, F, True)
            F.add(lambda: w.wait(vm="bias"), 0.0)
            aug_step(w, F, ACC["A"], [4 + ch], "v%d" % vBI[0], True)
            epi_swapped(w, F, "gelu", ACC["A"], [0, 1, 2, 3], sST[2], "stA")

        def zsum(i):
            F.ins(w, "v_add_f32 v%d, v%d, v%d" % (T, T, T + 1))
            F.ins(w, "v_add_f32 v%d, v%d, v%d" % (T + 2, T + 2, T + 3))
            if i == 0:
                F.ins(w, "v_add_f32 v%d, v%d, v%d" % (vZ, T, T + 2))
            else:
                F.ins(w, "v_add_f32 v%d, v%d, v%d" % (T, T, T + 2))
                F.ins(w, "v_add_f32 v%d, v%d, v%d" % (vZ, vZ, T))

        def kv_p2():
            aug_step(w, F, ACC["B"], [ch], EPSB, False)
            epi_tokens(w, F, "k", ACC["B"], PK, zsum)
            F.ins(w, "v_lshlrev_b32 v%d, 2, v0" % T)
            F.ins(w, "v_add_u32 v%d, %d, v%d" % (T, MISC + ST, T))
            F.add(lambda: w.lds("ds_write_b32 v%d, v%d" % (T, vZ), "kvadd"), 0.0)

        at(31, kv_p1)
        deadline[31] = Opt.dlA
        at(pstart[2] - 1, kv_p2)
        deadline[pstart[2] - 1] = NS - 3
        pre_tags[13] = ("stA",)
        hooks_post[13] = [lambda: publish(w, 1, OUTR[0])]
        kb = Opt.k1bar
        at(pstart[2] + 8 * (kb - 12) - 9, lambda: poll_issue(w))
        hooks_pre[kb] = [lambda: poll_check(w, 1, 1)]
        hooks_post[kb] = [early_loads]

    rate, dl = 0.0, None
    for i, d in enumerate(steps):
        fr = WF + 4 * (i % 4)
        w.wait(lg=("f%d" % i,) + (("xr",) if d["pi"] == 0 and d["s"] % 4 == 0 else ()))
        a, b = (fr, d["x"]) if d["swapped"] else (d["x"], fr)
        w.e("v_mfma_f32_32x32x16_bf16 %s, %s, %s, %s" % (vr(d["acc"], 16), vr(a), vr(b), "0" if d["s"] == 0 else vr(d["acc"], 16)))
        if d["s"] % 4 == 0:
            w.e("v_mfma_f32_16x16x32_bf16 %s, %s, %s, %s" % (vr(CSA), vr(SEL), vr(fr), "0" if d["s"] == 0 else vr(CSA)))
        used = 0.0
        a_ok = AQ and (kv or i >= pstart[2] + 8 * ((16 - len(AQ)) // 4) + 7)
        if a_ok and (not VQ or (i + ch) % 3 != 0):
            AQ.pop(0)()
            used = C_VM
        elif VQ and (d["pi"] == 0 or len(VQ) > 3 or a_ok or (i + ch) % 2 == 0):
            VQ.pop(0)()
            used = C_VM
        for fn in events.get(i, []): fn()
        stamp(w, "s%d" % i)
        if i + PF < NS:
            reads(i + PF)
        elif i + PF == NS:
            barrier(nb, [])
        if i in deadline:
            dl = deadline[i]
        if dl is not None and i <= dl:
            F.pull(F.total() / (dl - i + 1) - (1.0 if used else 0.0))
            if i == dl:
                F.drain()
    stamp(w, "p1end")
    VQ[:] = [x for pair in zip(AQ, VQ) for x in pair] + AQ[len(VQ):] + VQ[len(AQ):]
    if not kv:
        assert sorted(issue_at.keys()) == [], issue_at.keys()
        last = F.q.pop()
        F.drain()
        while VQ: VQ.pop(0)()
        w.lds("ds_write_b128 v%d, %s" % (vS0, vr(ACC["A"] + 8)), "xchw")
        w.lds("ds_write_b128 v%d, %s offset:8192" % (vS0, vr(ACC["A"] + 12)), "xchw")
        w.wait(vm=("W2_0",))
        w.wait_lg_all()
        last[0]()
        w.e("s_barrier\ns_branch L_p2q")
    else:
        F.drain()
        aug_step(w, F, ACC["A"], [2 + ch], 0, False, gap=False)
        F.drain()
        for _ in range(3):
            if VQ: VQ.pop(0)()
        epi_tokens(w, F, "v", ACC["A"], VV)
        while F.q:
            F.pull(3.0)
            if VQ: VQ.pop(0)()
        for s in range(2):
            w.e("v_mfma_f32_32x32x16_bf16 %s, %s, %s, %s" % (vr(D1, 16), vr(PK + 4 * s), vr(VV + 4 * s), "0" if s == 0 else vr(D1, 16)))
        while VQ: VQ.pop(0)()
        p2_read_addr(w, T)
        w.e("v_lshlrev_b32 v%d, 2, v%d" % (T, vLANE))
        w.e("s_lshl_b32 s%d, s%d, 1\ns_add_u32 s%d, s%d, %d" % (sT2, sWL, sT2, sT2, xch))
        w.e("v_add_u32 v%d, s%d, v%d" % (T, sT2, T))
        A0 = ACC["B"]
        w.e("s_lshr_b32 s%d, s%d, 1\ns_and_b32 s%d, s%d, 1" % (sT2, sW, sT3, sW))
        w.e("v_and_b32 v%d, 3, v%d\nv_lshlrev_b32 v%d, 8, v%d" % (P, vLANE, P, P))
        w.e("v_and_b32 v%d, 0x3c, v%d\nv_add_u32 v%d, v%d, v%d" % (P + 1, vLANE, P, P, P + 1))
        w.e("s_lshr_b32 s%d, s%d, 2\ns_lshl_b32 s%d, s%d, 13" % (sSPIN, sW, sSPIN, sSPIN))
        w.e("s_lshl_b32 s%d, s%d, 10\ns_add_u32 s%d, s%d, s%d" % (sTMP, sT3, sSPIN, sSPIN, sTMP))
        w.e("s_and_b32 s%d, s%d, 1\ns_lshl_b32 s%d, s%d, 6\ns_add_u32 s%d, s%d, s%d" % (sTMP, sT2, sTMP, sTMP, sSPIN, sSPIN, sTMP))
        w.e("s_add_u32 s%d, s%d, %d" % (sSPIN, sSPIN, xch))
        w.e("v_add_u32 v%d, s%d, v%d\nv_add_u32 v%d, 128, v%d" % (P, sSPIN, P, P + 1, P))
        w.e("v_and_b32 v%d, 31, v%d\nv_lshrrev_b32 v%d, 5, v%d" % (P + 2, vLANE, P + 3, vLANE))
        w.e("v_lshl_add_u32 v%d, v%d, 8, v%d\nv_lshlrev_b32 v%d, 2, v%d\nv_add_u32 v%d, %d, v%d" % (P + 2, P + 3, P + 2, P + 2, P + 2, P + 2, MISC + ST, P + 2))
        for r in range(8):
            w.e("v_cndmask_b32 v%d, v%d, v%d, s[%d:%d]" % (D1 + r, D1 + 8 + r, D1 + r, sLO, sLO + 1))
        for r in range(0, 8, 2):
            w.lds("ds_write2st64_b32 v%d, v%d, v%d offset0:%d offset1:%d" % (T, D1 + r, D1 + r + 1, r, r + 1), "kvadd")
        w.wait_lg_all()
        w.e("s_barrier")
        release(nb + 1)
        for qq in range(2):
            w.lds("ds_read2st64_b32 %s, v%d offset0:0 offset1:8" % (vr(A0 + 4 * qq, 2), P + qq), "kvr")
            w.lds("ds_read2st64_b32 %s, v%d offset0:16 offset1:24" % (vr(A0 + 4 * qq + 2, 2), P + qq), "kvr")
        for tb in range(4):
            w.lds("ds_read2_b32 %s, v%d offset0:%d offset1:%d" % (vr(A0 + 8 + 2 * tb, 2), P + 2, 64 * tb, 64 * tb + 32), "kvz")
        while VQ: VQ.pop(0)()
        assert sorted(issue_at.keys()) == [], issue_at.keys()
        w.e("s_lshl_b32 s%d, s%d, 11\ns_lshl_b32 s%d, s%d, 9" % (sT2, sT2, sT3, sT3))
        w.e("s_add_u32 s%d, s%d, s%d\ns_add_u32 s%d, s%d, s%d" % (sT2, sT2, sT3, sT2, sT2, sKVA))
        w.e("v_lshlrev_b32 v%d, 2, v%d" % (T, vLANE))
        w.e("v_lshrrev_b32 v%d, 4, v%d\nv_and_b32 v%d, 15, v%d" % (T + 2, vLANE, T + 3, vLANE))
        w.e("v_lshlrev_b32 v%d, 2, v%d\nv_lshl_add_u32 v%d, v%d, 11, v%d" % (T + 3, T + 3, T + 3, T + 2, T + 3))
        w.wait(lg="kvr")
        for qq in range(2):
            a = A0 + 4 * qq
            w.e("v_add_f32 v%d, v%d, v%d\nv_add_f32 v%d, v%d, v%d\nv_add_f32 v%d, v%d, v%d" % (a, a, a + 1, a + 2, a + 2, a + 3, a, a, a + 2))
            w.vmem("buffer_atomic_add_f32 v%d, v%d, %s, s%d offen offset:%d" % (a, T, srd(SWS), sT2, 256 * qq), "stL")
        w.wait(lg="kvz")
        a = A0 + 8
        for j in range(4): w.e("v_add_f32 v%d, v%d, v%d" % (a + j, a + j, a + 4 + j))
        w.e("v_add_f32 v%d, v%d, v%d\nv_add_f32 v%d, v%d, v%d\nv_add_f32 v%d, v%d, v%d" % (a, a, a + 1, a + 2, a + 2, a + 3, a, a, a + 2))
        w.e("s_cmp_eq_u32 s%d, 2\ns_cselect_b32 s%d, s%d, 0x7ff00000" % (sW, sT2, sKVA))
        w.vmem("buffer_atomic_add_f32 v%d, v%d, %s, s%d offen offset:1024" % (a, T + 3, srd(SWS), sT2), "stL")
        w.wait(vm=("W2_0", "stL"))
        w.wait_lg_all()
        w.e("s_barrier")
        l = label("pk")
        w.e("s_cmp_lg_u32 s%d, %d\ns_cbranch_scc1 %s" % (sW, PUBW, l))
        w.e("v_mov_b32 v%d, 1\nv_lshlrev_b32 v%d, 11, v%d\ns_and_b32 s%d, s2, 3\ns_lshl_b32 s%d, s%d, 7" % (T, T + 1, vLANE, sTMP, sTMP, sTMP))
        w.e("s_add_u32 s%d, s%d, %d\ns_mov_b64 exec, 0xffff" % (sTMP, sTMP, KVO + FLAG_OFF + KVCNT))
        w.e("buffer_atomic_add v%d, v%d, %s, s%d offen" % (T, T + 1, srd(SWS), sTMP))
        w.e("s_mov_b64 exec, -1\n%s:" % l)
        w.e("s_branch L_p2kv")
    return w


def phase2(vmqs, part):
    w = Stream(vmqs)
    vKE, vKO, vPW, vPR, vOUT = 12, 13, 14, 15, 2
    vKW, vKR, KVL = 232, 233, 131072
    WFR, YA, SA, KVB = 16, 48, (32, 80), 96
    D = [144, 160]
    OP, G, XRES, B2R, TM = 200, 208, 216, 220, 224
    w.e({"q": "L_p2q:", "kv": "L_p2kv:", "tail": "L_p2tail:"}[part])
    w.c("==== phase 2, " + part)
    F = Fill()
    if part != "tail":
        stamp(w, "c0")
        p2_order(w, [4, 5, 7, 8], sT3)
    if part == "q":
        w.lds("ds_read_b128 %s, v%d" % (vr(80), vS1), "xchr")
        w.lds("ds_read_b128 %s, v%d offset:8192" % (vr(84), vS1), "xchr")
        F.add(lambda: None, 7.0)
        F.add(lambda: w.wait(lg="xchr"), 0.01)
        for j in range(8):
            F.ins(w, "v_add_f32 v%d, v%d, v%d" % (ACC["A"] + j, ACC["A"] + j, 80 + j))
        epi_swapped(w, F, "gelu", ACC["A"], [0, 1], sST[2], "stC")
    if part == "tail":
        w.lg = ["w0"] * 4
        L = ["s_mov_b32 s%d, s%d" % (SWO, sWOP), "s_mov_b32 s%d, s%d" % (SWO + 1, sWOP + 1), "s_mov_b32 s%d, 524288" % (SWO + 2),
             "s_mov_b32 s%d, s%d" % (SOUT, sOUTP), "s_mov_b32 s%d, s%d" % (SOUT + 1, sOUTP + 1), "s_mov_b32 s%d, 2097152" % (SOUT + 2),
             "s_and_b32 s%d, s%d, 3" % (sT2, sW)]
        L += ["v_lshrrev_b32 v%d, 5, v%d" % (TM, vLANE), "v_and_b32 v%d, 15, v%d" % (TM + 1, vLANE), "v_lshl_add_u32 v%d, v%d, 4, v%d" % (TM + 1, TM, TM + 1),
              "v_lshlrev_b32 v%d, 4, v%d" % (TM + 1, TM + 1), "v_lshlrev_b32 v%d, 4, v%d" % (TM, TM), "v_add_u32 v%d, 1024, v%d" % (TM, TM),
              "v_cndmask_b32 v%d, v%d, v%d, s[%d:%d]" % (vKE, TM, TM + 1, sLO, sLO + 1), "v_cndmask_b32 v%d, v%d, v%d, s[%d:%d]" % (vKO, TM + 1, TM, sLO, sLO + 1),
              "v_add_u32 v%d, 512, v%d" % (TM + 1, TM + 1), "v_add_u32 v%d, 32, v%d" % (TM, TM),
              "v_cndmask_b32 v4, v%d, v%d, s[%d:%d]" % (TM, TM + 1, sLO, sLO + 1), "v_cndmask_b32 v5, v%d, v%d, s[%d:%d]" % (TM + 1, TM, sLO, sLO + 1),
              "s_lshr_b32 s%d, s%d, 2" % (sT3, sW), "s_lshl_b32 s%d, s%d, 1" % (sKVA, sT2), "s_add_u32 s%d, s%d, s%d" % (sT3, sT3, sKVA),
              "s_lshl_b32 s%d, s%d, 13" % (sKVA, sT3), "s_add_u32 s%d, s%d, %d" % (sKVA, sKVA, KVO),
              "s_lshl_b32 s%d, s%d, 12" % (sT3, sT3), "s_add_u32 s%d, s%d, %d" % (sT3, sT3, KVL), "v_add_u32 v%d, s%d, v%d" % (vKW, sT3, vA),
              "s_lshl_b32 s%d, s%d, 13" % (sT3, sT2), "s_add_u32 s%d, s%d, %d" % (sT3, sT3, KVL), "v_add_u32 v%d, s%d, v%d" % (vKR, sT3, vA),
              "v_add_u32 v%d, s%d, v%d" % (vKR + 1, sU2[8], vKR), "v_add_u32 v%d, s%d, v%d" % (vKR, sU2[7], vKR)]
        L += ["v_lshrrev_b32 v%d, 3, v0" % TM, "v_lshlrev_b32 v%d, 10, v%d" % (TM, TM), "v_and_b32 v%d, 7, v0" % (TM + 1), "v_lshlrev_b32 v%d, 4, v%d" % (TM + 1, TM + 1),
              "v_add_u32 v%d, v%d, v%d" % (vOUT, TM, TM + 1),
              "s_lshl_b32 s%d, s%d, 16" % (sXB, sTP), "s_lshl_b32 s%d, s%d, 7" % (sT3, sCB), "s_add_u32 s%d, s%d, s%d" % (sXB, sXB, sT3),
              "s_mov_b32 s%d, s%d" % (SB, sB2P), "s_mov_b32 s%d, s%d" % (SB + 1, sB2P + 1), "s_mov_b32 s%d, 1024" % (SB + 2)]
        for s in L: F.ins(w, s)
        F.add(lambda: w.vmem("buffer_load_dwordx4 %s, v%d, %s, s%d offen" % (vr(XRES), vOUT, srd(SX), sXB), "xres"), 1)
        F.add(lambda: w.vmem("buffer_load_dwordx4 %s, v%d, %s, s%d offen" % (vr(B2R), TM + 1, srd(SB), sT3), "b2"), 1)
        L = ["v_and_b32 v%d, 31, v%d" % (TM, vLANE), "v_lshrrev_b32 v%d, 5, v%d" % (TM + 1, vLANE), "v_and_b32 v%d, 7, v%d" % (TM + 2, vLANE),
             "v_xor_b32 v%d, v%d, v%d" % (TM + 1, TM + 1, TM + 2), "v_lshlrev_b32 v%d, 8, v%d" % (TM, TM), "v_lshl_add_u32 v%d, v%d, 4, v%d" % (TM, TM + 1, TM),
             "s_lshr_b32 s%d, s%d, 2" % (sT3, sW), "s_lshl_b32 s%d, s%d, 13" % (sT3, sT3), "s_lshl_b32 s%d, s%d, 14" % (sT2, sT2),
             "s_add_u32 s%d, s%d, s%d" % (sT3, sT3, sT2), "s_add_u32 s%d, s%d, %d" % (sT3, sT3, PY), "v_add_u32 v%d, s%d, v%d" % (vPW, sT3, TM)]
        L += ["v_lshrrev_b32 v%d, 3, v0" % TM, "v_and_b32 v%d, 7, v%d" % (TM + 1, TM), "v_and_b32 v%d, 7, v0" % (TM + 2), "v_lshlrev_b32 v%d, 1, v%d" % (TM + 2, TM + 2),
              "v_xor_b32 v%d, v%d, v%d" % (TM + 1, TM + 1, TM + 2), "v_lshlrev_b32 v%d, 8, v%d" % (TM, TM), "v_lshl_add_u32 v%d, v%d, 4, v%d" % (TM, TM + 1, TM),
              "v_add_u32 v%d, %d, v%d" % (vPR, PY, TM)]
        for s in L: F.ins(w, s)

    def stage(h):
        return SA[h // 2] + 8 * (h % 2)

    def w_reads(m, s):
        base = (m % 4) * 32768 + s * 2048
        hi = base >= 65536
        fr = WFR + 8 * (s % 2)
        for t in range(2):
            a = vWR + t + (2 if hi else 0)
            o = base - (65536 if hi else 0)
            w.lds("ds_read_b64_tr_b16 %s, v%d offset:%d" % (vr(fr + 4 * t, 2), a, o), "w%d" % s)
            w.lds("ds_read_b64_tr_b16 %s, v%d offset:%d" % (vr(fr + 4 * t + 2, 2), a, o + 1024), "w%d" % s)

    def kv_load(h, half):
        r = stage(h) + 4 * half
        va = (vKE if h % 2 == 0 else vKO) if half == 0 else (4 if h % 2 == 0 else 5)
        w.e("s_add_u32 s%d, s%d, %d" % (sTMP, sKVA, 2048 * h))
        w.vmem("buffer_load_dwordx4 %s, v%d, %s, s%d offen sc1" % (vr(r), va, srd(SWS), sTMP), "kv%d" % h)

    def kv_cvt(h):
        w.wait(vm="kv%d" % h)
        r = stage(h)
        for j in range(4):
            w.e("v_cvt_pk_bf16_f32 v%d, v%d, v%d" % (KVB + 4 * h + j, r + 2 * j, r + 2 * j + 1))
        w.lds("ds_write_b128 v%d, %s offset:%d" % (vKW, vr(KVB + 4 * h), 1024 * h), "kvw")

    def part_write(acc, tag, which=range(4)):
        for i in which:
            if i == 0:
                a = vPW
            else:
                a = TM + i
                w.e("v_xor_b32 v%d, %d, v%d" % (a, 32 * i, vPW))
            for t in range(2):
                w.lds("ds_write_b128 v%d, %s offset:%d" % (a, vr(acc[t] + 4 * i), 128 * t), tag)

    def part_read(dst, tag):
        w.e("v_xor_b32 v%d, 16, v%d" % (TM, vPR))
        for k in range(4):
            w.lds("ds_read_b128 %s, v%d offset:%d" % (vr(dst + 8 * k), vPR, 16384 * k), tag)
            w.lds("ds_read_b128 %s, v%d offset:%d" % (vr(dst + 8 * k + 4), TM, 16384 * k), tag)

    def part_sum(dst):
        for j in range(8): w.e("v_add_f32 v%d, v%d, v%d" % (dst + j, dst + j, dst + 8 + j))
        for j in range(8): w.e("v_add_f32 v%d, v%d, v%d" % (dst + 16 + j, dst + 16 + j, dst + 24 + j))
        for j in range(8): w.e("v_add_f32 v%d, v%d, v%d" % (dst + j, dst + j, dst + 16 + j))

    def num_mfma(h):
        m, s = 7 + h // 4, h % 4
        w.wait(vm="A%d_%d" % (m, s), lg="kb%d" % h)
        w.e("v_mfma_f32_32x32x16_bf16 %s, %s, %s, 0" % (vr(D[h % 2], 16), vr(KVB + 4 * h), vr(AR + 16 * (m % 4) + 4 * s)))

    def o_valu(h):
        d = D[h % 2]
        num, den = (d, d + 8) if h % 2 == 0 else (d + 8, d)
        o = OP + 4 * (h % 2)
        V = ["v_add_f32 v%d, s%d, v%d" % (den, sEPS, den), "v_rcp_f32 v%d, v%d" % (den, den)]
        V += ["v_mul_f32 v%d, v%d, v%d" % (num + j, num + j, den) for j in range(8)]
        V += ["v_cvt_pk_bf16_f32 v%d, v%d, v%d" % (o + j, num + 2 * j, num + 2 * j + 1) for j in range(4)]
        return V

    checks = {1: (2, 0), 3: (3, 0, True), 4: (4, 0)}

    def vm_plan(m, s):
        A = lambda mm: (lambda: a_load(w, mm, s))
        Wd = lambda mm: (lambda: w2_dma(w, mm, s))
        W3 = [lambda: w2_dma(w, 3, s + 2)] if s < 2 else []
        return {0: ([], []), 1: (W3 + [A(4)], [Wd(4)]), 2: ([Wd(5)], [A(5)]), 3: ([Wd(6)], [lambda: kv_load(s, 0), lambda: kv_load(s, 1)]),
                4: ([A(6)], [A(7)]), 5: ([Wd(7)], [A(8)]), 6: ([Wd(8)] if s < 2 else [], [lambda: w2_dma(w, 8, s + 2)] if s < 2 else [])}[m]

    def mf(acc, a, b, first):
        w.e("v_mfma_f32_32x32x16_bf16 %s, %s, %s, %s" % (vr(acc, 16), vr(a), vr(b), "0" if first else vr(acc, 16)))

    def open_chunk(m):
        w.c("chunk %d" % m)
        if m in checks:
            poll_check(w, *checks[m])
        pub = {1: ("stL", 3), 2: ("stC", 4)}.get(m) if part == "q" else None
        w.wait(vm=("W2_%d" % m,) + ((pub[0],) if pub else ()))
        w.wait_lg_all()
        w.e("s_barrier")
        stamp(w, "c%d" % m)
        if m == 7:
            for h in range(8):
                w.lds("ds_read_b128 %s, v%d offset:%d" % (vr(KVB + 4 * h), vKR + h // 4, 1024 * (h % 4)), "kb%d" % h)
        w_reads(m, 0)
        if pub:
            publish(w, pub[1], TM)

    if part != "tail":
        w_reads(0, 0)
    else:
        F.pull(16)
    for m in (range(3, 9) if part == "tail" else range(3)):
        for s in range(4):
            fr = WFR + 8 * (s % 2)
            if m < 7:
                if s < 3:
                    w_reads(m, s + 1)
                if s == (0 if m == 0 else Opt.pollstep) and (m + 1) in checks:
                    poll_issue(w, True if len(checks[m + 1]) > 2 else None)
                if m == 6 and s > 0:
                    kv_cvt(s - 1)
                    if s == 3: kv_cvt(3)
                ar = AR + 16 * (m % 4) + 4 * s
                w.wait(vm="A%d_%d" % (m, s), lg="w%d" % s)
                if s == 3:
                    if m in (1, 5):
                        assert not F.q
                    open_chunk(m + 1)
                plan = vm_plan(m, s)
                for t in range(2):
                    mf(YA + 16 * t, fr + 4 * t, ar, m == 0 and s == 0)
                    for fn in plan[t]: fn()
                    F.pull(10.0 if part == "q" else 6.0)
                if m == 6 and s == 3:
                    num_mfma(0)
            else:
                h = 4 * (m - 7) + s
                pf = WFR + 8 * ((s + 1) % 2)
                if h + 1 < 8:
                    num_mfma(h + 1)
                V = o_valu(h)
                w.e("\n".join(V[:7]))
                if h > 0:
                    mf(SA[0], pf, OP + 4 * ((h - 1) % 2), h == 1)
                w.e("\n".join(V[7:]))
                if h > 0:
                    mf(SA[1], pf + 4, OP + 4 * ((h - 1) % 2), h == 1)
                if s < 3:
                    w_reads(m, s + 1)
                if m == 7:
                    part_write((YA, YA + 16), "py", [s])
                if m == 8 and s == 0:
                    part_read(YA, "pyr")
                if h == 3:
                    open_chunk(8)
                else:
                    w.wait(lg="w%d" % s)
    if part != "tail":
        assert not F.q and w.lg == ["w0"] * 4, w.lg
        if part == "q":
            w.e("s_branch L_p2tail")
        return w
    for t in range(2):
        mf(SA[t], WFR + 8 + 4 * t, OP + 4, False)
    stamp(w, "send")
    w.e("v_add_u32 v%d, 0x10000, v%d\nv_add_u32 v%d, 0x10000, v%d" % (vPW, vPW, vPR, vPR))
    part_write(SA, "ps")
    w.wait(vm="b2", lg="pyr")
    part_sum(YA)
    for j in range(4):
        w.e("v_lshlrev_b32 v%d, 16, v%d\nv_and_b32 v%d, 0xffff0000, v%d" % (D[0] + 2 * j, B2R + j, D[0] + 2 * j + 1, B2R + j))
    for j in range(8): w.e("v_add_f32 v%d, v%d, v%d" % (YA + j, YA + j, D[0] + j))
    for j in range(8): w.e("v_mul_f32 v%d, %s, v%d" % (G + j, f32(-LOG2E), YA + j))
    for j in range(8): w.e("v_exp_f32 v%d, v%d" % (G + j, G + j))
    for j in range(8): w.e("v_add_f32 v%d, 1.0, v%d" % (G + j, G + j))
    for j in range(8): w.e("v_rcp_f32 v%d, v%d" % (G + j, G + j))
    for j in range(8): w.e("v_mul_f32 v%d, v%d, v%d" % (G + j, G + j, YA + j))
    w.wait(vm="xres")
    for j in range(4):
        w.e("v_lshlrev_b32 v%d, 16, v%d\nv_and_b32 v%d, 0xffff0000, v%d" % (OP + 2 * j, XRES + j, OP + 2 * j + 1, XRES + j))
    w.wait_lg_all()
    w.e("s_barrier")
    part_read(YA, "psr")
    w.wait_lg_all()
    part_sum(YA)
    for j in range(8): w.e("v_fma_f32 v%d, v%d, v%d, v%d" % (YA + j, YA + j, G + j, OP + j))
    for j in range(4): w.e("v_cvt_pk_bf16_f32 v%d, v%d, v%d" % (YA + 8 + j, YA + 2 * j, YA + 2 * j + 1))
    w.e("buffer_store_dwordx4 %s, v%d, %s, s%d offen" % (vr(YA + 8), vOUT, srd(SOUT), sXB))
    if Opt.stamps:
        stamp(w, "end")
        l = label("st")
        w.e("s_cmp_lg_u32 s%d, 0\ns_cbranch_scc1 %s\ns_waitcnt lgkmcnt(0)" % (sW, l))
        for j in range(8): w.e("v_mov_b32 v%d, %s" % (16 + j, "s%d" % (sTS + 2 * j) if j < NSTAMP else "0"))
        w.e("s_lshl_b32 s%d, s2, 5\ns_add_u32 s%d, s%d, %d\nv_mov_b32 v2, 0\ns_mov_b64 exec, 1" % (sTMP, sTMP, sTMP, WS_BYTES))
        w.e("buffer_store_dwordx4 v[16:19], v2, %s, s%d offen\nbuffer_store_dwordx4 v[20:23], v2, %s, s%d offen offset:16" % (srd(SWS), sTMP, srd(SWS), sTMP))
        w.e(l + ":")
    w.e("s_endpgm")
    return w


def prologue():
    w = Stream()
    stamp(w, "start")
    w.e("s_cmp_ge_u32 s2, 256\ns_cbranch_scc1 L_exit")
    for r, off in ((SX, 0), (SW1, 32), (SWS, 80), (SB, 40), (SWQ, 8), (SW2, 48), (sWOP, 16), (sB2P, 56), (sOUTP, 64), (SDBG, 72)):
        w.e("s_load_dwordx2 s[%d:%d], s[0:1], %d" % (r, r + 1, off))
    w.e("v_lshrrev_b32 v2, 6, v0\nv_and_b32 v%d, 63, v0" % vLANE)
    w.e("s_lshr_b32 s76, s2, 3")
    w.e("v_readfirstlane_b32 s%d, v2" % sW)
    w.e("s_getpc_b64 s[80:81]\nL_pc:")
    w.e("s_mul_i32 s77, s76, 12\nv_add_u32 v19, s77, v%d\nv_lshlrev_b32 v19, 7, v19\nv_min_u32 v19, L_code_end-L_pc-4, v19" % vLANE)
    w.e("s_cmp_lg_u32 s%d, 7\ns_cbranch_scc1 L_nopf" % sW)
    w.e("s_mov_b64 exec, 0xfff\nglobal_load_dword v24, v19, s[80:81]\ns_mov_b64 exec, -1\nL_nopf:")
    w.e("s_and_b32 s%d, s76, 7\ns_lshr_b32 s77, s76, 3" % sCB)
    w.e("s_and_b32 s78, s2, 1\ns_lshl3_add_u32 s%d, s78, s%d" % (sRB, sCB))
    w.e("s_bfe_u32 s78, s2, 0x20001\ns_lshl2_add_u32 s%d, s78, s77" % sG)
    w.e("s_and_b32 s78, s2, 7\ns_lshl2_add_u32 s%d, s78, s77" % sTP)
    w.e("s_lshl_b32 s%d, s%d, 10" % (sWL, sW))
    w.e("s_lshl_b32 s%d, s%d, 17\ns_add_u32 s%d, s%d, 65536" % (sXB, sRB, sSPIN, sXB))
    w.e("s_lshl1_add_u32 s78, s77, s%d\ns_lshl_b32 s78, s78, 3\ns_and_b32 s%d, s78, 63\ns_add_u32 s78, s78, 8\ns_and_b32 s%d, s78, 63" % (sCB, sK8[0], sK8[1]))
    w.e("s_lshr_b32 s76, s%d, 2\ns_mul_i32 s76, s76, 448\ns_bfe_u32 s77, s%d, 0x10001" % (sG, sG))
    w.e("s_mul_i32 s78, s77, 192\ns_add_u32 s79, s78, 64\ns_lshl_b32 s78, s78, 1")
    w.e("s_lshl_b32 s%d, s77, 5\ns_add_u32 s%d, s%d, s76\ns_add_u32 s%d, s%d, 192" % (sHC, sHC, sHC, sHC, sHC))
    w.e("s_bitcmp1_b32 s%d, 0\ns_cselect_b32 s78, s78, s79\ns_cselect_b32 s82, 12, 9\ns_cselect_b32 s83, 14, 8\ns_lshl_b32 s82, s82, 13\ns_lshl_b32 s83, s83, 13" % sG)
    w.e("s_add_u32 s78, s78, s76\ns_lshl_b32 s%d, s78, 1" % sCOL[0])
    w.e("s_add_u32 s82, s82, s%d\ns_add_u32 s83, s83, s%d" % (sWL, sWL))
    w.e("v_lshrrev_b32 v16, 3, v0\nv_and_b32 v17, 7, v0")
    w.e("v_bfe_u32 v18, v0, 4, 3\nv_xor_b32 v18, v17, v18\nv_lshlrev_b32 v18, 4, v18")
    w.e("v_lshl_add_u32 v%d, v16, 10, v18" % vXD)
    w.e("v_bfe_u32 v18, v0, 4, 1\nv_lshlrev_b32 v18, 2, v18\nv_xor_b32 v18, v17, v18\nv_lshlrev_b32 v18, 4, v18")
    w.e("s_movk_i32 s%d, 3584\nv_mad_u32_u24 v%d, v16, s%d, v18" % (sTMP, vBD, sTMP))
    w.e("s_mov_b32 s%d, 2097152\ns_mov_b32 s%d, 0x20000\ns_mov_b32 s%d, 1835008\ns_mov_b32 s%d, 0x20000" % (SX + 2, SX + 3, SW1 + 2, SW1 + 3))
    w.e("s_waitcnt lgkmcnt(0)")
    stamp(w, "ka")
    for c in range(2):
        for hx in range(2):
            w.e("s_add_u32 m0, s82, %d\ns_lshl4_add_u32 s%d, s%d, s%d" % ((3 * c + hx) * UNIT, sTMP, sK8[c], sSPIN if hx else sXB))
            w.e("buffer_load_dwordx4 v%d, %s, s%d offen lds" % (vXD, srd(SX), sTMP))
        w.e("s_add_u32 m0, s83, %d\ns_mul_i32 s%d, s%d, %d\ns_add_u32 s%d, s%d, s%d" % (3 * c * UNIT, sTMP, sK8[c], 8 * 3584, sTMP, sTMP, sCOL[0]))
        w.e("buffer_load_dwordx4 v%d, %s, s%d offen lds" % (vBD, srd(SW1), sTMP))
        if c == 0:
            w.e("s_barrier")
    stamp(w, "d0")
    w.e("s_bitcmp1_b32 s%d, 0\ns_cbranch_scc1 L_kv" % sG)
    w.e("s_cmp_ge_u32 s%d, 4\ns_cbranch_scc1 L_q1\ns_branch L_q0" % sW)
    w.e("L_kv:\ns_cmp_ge_u32 s%d, 4\ns_cbranch_scc1 L_kv1\ns_branch L_kv0" % sW)
    w.e("L_exit:\ns_endpgm")
    return w


HEADER = """; Fused LayerNorm + linear attention + GELU MLP gate, one persistent launch (generated by gen/gen.py).
; @launch grid=(256,1,1) block=(512,1,1) lds=163840
.amdgcn_target "amdgcn-amd-amdhsa--gfx950"
.text
.globl {k}
.p2align 8
.type {k},@function
{k}:
"""
FOOTER = """
.section .rodata,"a"
.p2align 6
.amdhsa_kernel {k}
  .amdhsa_next_free_vgpr 256
  .amdhsa_next_free_sgpr 102
  .amdhsa_accum_offset 256
  .amdhsa_group_segment_fixed_size 0
  .amdhsa_kernarg_size 88
  .amdhsa_user_sgpr_count 2
  .amdhsa_user_sgpr_kernarg_segment_ptr 1
  .amdhsa_system_sgpr_workgroup_id_x 1
  .amdhsa_float_denorm_mode_32 3
.end_amdhsa_kernel
"""


def join_padded(preds, lines):
    own = pad_hazards(lines)
    for p in preds:
        both = pad_hazards(p[-40:] + lines)
        assert both[40:] == own, "hazard across a branch"
    return own


def build():
    out = [HEADER.format(k=KNAME)]
    out += pad_hazards(prologue().lines)
    qs, tails = {}, {}
    for name, kv, ch in (("L_q0", False, 0), ("L_q1", False, 1), ("L_kv0", True, 0), ("L_kv1", True, 1)):
        out.append(".p2align 6\n" + name + ":")
        w = phase1(kv, ch)
        qs.setdefault(kv, []).append(w.vmq[0])
        lines = pad_hazards(w.lines)
        tails.setdefault(kv, []).append(lines)
        out += lines
    heads = {}
    for kv, part in ((False, "q"), (True, "kv")):
        out.append(".p2align 6")
        heads[kv] = phase2(qs[kv], part)
        lines = join_padded(tails[kv], heads[kv].lines)
        tails[kv] = lines
        out += lines
    out += join_padded([tails[False], tails[True]], phase2(heads[False].vmq + heads[True].vmq, "tail").lines)
    out.append("L_code_end:")
    out.append(FOOTER.format(k=KNAME))
    return "\n".join(("    " + l if not (l.endswith(":") or l.startswith(".") or l.startswith(";") or "\n" in l) else l) for l in out)


if __name__ == "__main__":
    Opt.cyc = "--cyc" in sys.argv
    Opt.touch = "--notouch" not in sys.argv
    for a in sys.argv[1:]:
        if a.startswith("--k1bar="):
            Opt.k1bar = int(a[8:])
        if a.startswith("--tmode="):
            Opt.tmode = a[8:]
        if a.startswith("--dlA="):
            Opt.dlA = int(a[6:])
        if a.startswith("--tsteps="):
            Opt.tsteps = [int(x) for x in a[9:].split(",")]
        if a.startswith("--stamps="):
            Opt.stamps = a[9:].split(",")
            assert len(Opt.stamps) == NSTAMP
    dst = [a for a in sys.argv[1:] if not a.startswith("--")]
    txt = build()
    if dst:
        open(dst[0], "w").write(txt)
    else:
        print(txt)
```
